```python
import torch

def _softmax(x, axis=-1):
    return torch.softmax(x, dim=axis)
def _gelu(x):
    return torch.nn.functional.gelu(x, approximate="tanh")
def _silu(x):
    return torch.nn.functional.silu(x)
def _sigmoid(x):
    return torch.sigmoid(x)
def _layernorm(x, axis=-1, eps=1e-5):
    m = x.mean(dim=axis, keepdim=True)
    v = x.var(dim=axis, keepdim=True, unbiased=False)
    return (x - m) / torch.sqrt(v + eps)
def _scatter_add(tgt, idx, src, axis=0):
    return tgt.clone().index_add_(axis, idx, src)
def _segment_sum(src, seg, n):
    out = torch.zeros((n,) + src.shape[1:], dtype=src.dtype)
    return out.index_add_(0, seg, src)
def _pad(x, pw):
    flat = tuple(v for pair in reversed(pw) for v in pair)
    return torch.nn.functional.pad(x, flat)

kernel_name = 'parallel_sum__ssm_conv_s5__dense_activation_squared_relu__prompt'

def setup_inputs():

    _w = (lambda a: (lambda t: t.to(torch.bfloat16) if t.is_floating_point() else t)(torch.as_tensor(a)))
    def _A_setup():
        B, S, D = 1, 2048, 512
        P = D
        Lambda_re = -0.5 * (lambda _x: torch.exp(torch.as_tensor(_x)))((lambda *s: torch.randn(*s, dtype=torch.bfloat16) * 0.8)(P))
        Lambda_im = (lambda *s: torch.randn(*s, dtype=torch.bfloat16) * 0.8)(P) * 1.0
        B_re = (lambda *s: torch.randn(*s, dtype=torch.bfloat16) * 0.8)(P, D) * (D ** -0.5)
        B_im = (lambda *s: torch.randn(*s, dtype=torch.bfloat16) * 0.8)(P, D) * (D ** -0.5)
        C_re = (lambda *s: torch.randn(*s, dtype=torch.bfloat16) * 0.8)(D, P) * (P ** -0.5)
        C_im = (lambda *s: torch.randn(*s, dtype=torch.bfloat16) * 0.8)(D, P) * (P ** -0.5)
        log_dt = (lambda *s: torch.randn(*s, dtype=torch.bfloat16) * 0.8)(P) * 0.3 - 2.0
        Dskip = (lambda *s: torch.randn(*s, dtype=torch.bfloat16) * 0.4)(D)
        return {
            "x": _w((lambda *s: torch.randn(*s, dtype=torch.bfloat16) * 0.05)(B, S, D)),
            "Lambda_re": _w(Lambda_re),
            "Lambda_im": _w(Lambda_im),
            "B_re": _w(B_re),
            "B_im": _w(B_im),
            "C_re": _w(C_re),
            "C_im": _w(C_im),
            "log_dt": _w(log_dt),
            "Dskip": _w(Dskip),
        }
    _A_in = _A_setup()

    def _B_setup():
        B, S, D, F = 1, 2048, 512, 1376
        return {
            "x": _w((lambda *s: torch.randn(*s, dtype=torch.bfloat16) * 0.05)(B, S, D)),
            "w1": _w((lambda *s: torch.randn(*s, dtype=torch.bfloat16) * 0.05)(D, F)),
            "b1": _w((lambda *s: torch.randn(*s, dtype=torch.bfloat16) * 0.2)(F)),
            "w2": _w((lambda *s: torch.randn(*s, dtype=torch.bfloat16) * 0.05)(F, D)),
            "b2": _w((lambda *s: torch.randn(*s, dtype=torch.bfloat16) * 0.8)(D)),
        }
    _B_in = _B_setup()

    return {
        "A_x": _A_in["x"],
        "A_Lambda_re": _A_in["Lambda_re"],
        "A_Lambda_im": _A_in["Lambda_im"],
        "A_B_re": _A_in["B_re"],
        "A_B_im": _A_in["B_im"],
        "A_C_re": _A_in["C_re"],
        "A_C_im": _A_in["C_im"],
        "A_log_dt": _A_in["log_dt"],
        "A_Dskip": _A_in["Dskip"],
        "B_x": _B_in["x"],
        "B_w1": _B_in["w1"],
        "B_b1": _B_in["b1"],
        "B_w2": _B_in["w2"],
        "B_b2": _B_in["b2"],
    }

def reference(A_x, A_Lambda_re, A_Lambda_im, A_B_re, A_B_im, A_C_re, A_C_im, A_log_dt, A_Dskip, B_x, B_w1, B_b1, B_w2, B_b2):
    def _A_ref(x, Lambda_re, Lambda_im, B_re, B_im, C_re, C_im, log_dt, Dskip):
        Bsz, L, H = x.shape
        Lam = Lambda_re + 1j * Lambda_im
        Bmat = B_re + 1j * B_im
        Cmat = C_re + 1j * C_im
        dt = torch.exp(log_dt)
        Lam_bar = torch.exp(dt * Lam)
        B_bar = ((Lam_bar - 1.0) / Lam)[:, None] * Bmat
        Bu = torch.einsum("bld,pd->blp", x + 0j, B_bar)
        h = torch.zeros_like(Bu[:, 0, :])
        hs = []
        for t in range(L):
            h = Lam_bar[None, :] * h + Bu[:, t, :]
            hs.append(h)
        hseq = torch.stack(hs, 1)
        y = 2.0 * torch.einsum("blp,dp->bld", hseq, Cmat).real + x * Dskip[None, None, :]
        return y

    def _B_ref(x, w1, b1, w2, b2):
        h = torch.einsum("bsd,df->bsf", x, w1) + b1
        zero = torch.zeros_like(h)
        r = torch.where(h > zero, h, zero)
        h = r * r
        out = torch.einsum("bsf,fd->bsd", h, w2) + b2
        return out

    x = A_x
    xn = _layernorm(x, axis=-1)
    return x + _A_ref(xn, A_Lambda_re, A_Lambda_im, A_B_re, A_B_im, A_C_re, A_C_im, A_log_dt, A_Dskip) + _B_ref(xn, B_w1, B_b1, B_w2, B_b2)
```

```python
import re

class Ins:
    __slots__ = ("text", "kind", "tag", "w", "r", "meta")
    def __init__(self, text, kind=None, tag=None, meta=None):
        self.text = text; self.kind = kind; self.tag = tag; self.meta = meta
        self.w = set(); self.r = set()

_reg = re.compile(r"^(-|\|)?([vas])(\d+)\|?$")
_rng = re.compile(r"^(-|\|)?([vas])\[(\d+):(\d+)\]\|?$")

def regs_of(op):
    op = op.strip()
    if op.startswith("-|"): op = op[1:]
    if op.startswith("abs("): op = op[4:-1]
    m = _reg.match(op)
    if m: return {(m.group(2), int(m.group(3)))}
    m = _rng.match(op)
    if m: return {(m.group(2), i) for i in range(int(m.group(3)), int(m.group(4)) + 1)}
    if op == "vcc": return {("s", "vcc_lo"), ("s", "vcc_hi")}
    if op in ("vcc_lo", "vcc_hi"): return {("s", op)}
    if op == "exec": return {("s", "exec_lo"), ("s", "exec_hi")}
    if op in ("exec_lo", "exec_hi"): return {("s", op)}
    if op == "m0": return {("s", "m0")}
    return set()

TRANS = ("v_exp_f32", "v_log_f32", "v_rcp_f32", "v_rsq_f32", "v_sqrt_f32", "v_sin_f32", "v_cos_f32", "v_rcp_iflag_f32")
VCC = {("s", "vcc_lo"), ("s", "vcc_hi")}
EXEC = {("s", "exec_lo"), ("s", "exec_hi")}

def classify(ins):
    t = ins.text.split(";")[0].strip()
    if not t or t.endswith(":") or t.startswith("."):
        ins.kind = ins.kind or ("label" if t.endswith(":") else "dir"); return
    parts = t.split(None, 1)
    mn = parts[0]
    rest = parts[1] if len(parts) > 1 else ""
    ops = []
    depth = 0; cur = ""
    for ch in rest:
        if ch == "[" or ch == "(": depth += 1
        if ch == "]" or ch == ")": depth -= 1
        if ch == "," and depth == 0: ops.append(cur.strip()); cur = ""
        else: cur += ch
    if cur.strip(): ops.append(cur.strip())
    mods = ""
    if ops:
        sp = ops[-1].split(None, 1)
        ops[-1] = sp[0]
        mods = sp[1] if len(sp) > 1 else ""
    R = [regs_of(o) for o in ops]
    allr = lambda l: set().union(*l) if l else set()
    ins.meta = dict(ins.meta or {}, mn=mn, ops=ops, mods=mods)
    if mn.startswith("v_mfma"):
        ins.kind = "mfma"; ins.w = R[0]; ins.r = allr(R[1:])
        ins.meta.update(a=R[1], b=R[2], c=R[3], passes=8 if "32x32x16" in mn else 4)
    elif mn.startswith("v_cmpx"):
        ins.kind = "valu"; ins.w = R[0] | EXEC; ins.r = allr(R[1:])
    elif mn.startswith("v_cmp"):
        ins.kind = "valu"; ins.w = R[0]; ins.r = allr(R[1:])
    elif mn.startswith("v_readfirstlane") or mn.startswith("v_readlane"):
        ins.kind = "valu"; ins.w = R[0]; ins.r = allr(R[1:])
    elif mn.startswith("v_permlane"):
        ins.kind = "valu"; ins.w = R[0] | R[1]; ins.r = R[0] | R[1]
    elif mn.startswith(("v_fmac", "v_dot2c", "v_writelane")):
        ins.kind = "valu"; ins.w = R[0]; ins.r = allr(R)
    elif mn.startswith(("v_add_co", "v_sub_co", "v_addc_co", "v_subb_co", "v_div_scale", "v_mad_u64")):
        ins.kind = "valu"; ins.w = R[0] | R[1]; ins.r = allr(R[2:])
    elif mn == "v_nop":
        ins.kind = "valu"
    elif mn.startswith("v_"):
        ins.kind = "valu"; ins.w = R[0]; ins.r = allr(R[1:])
    elif mn.startswith("ds_read") or mn.startswith("ds_bpermute") or mn.startswith("ds_swizzle"):
        ins.kind = "ds"; ins.w = R[0]; ins.r = allr(R[1:])
    elif mn.startswith("ds_"):
        ins.kind = "ds"; ins.r = allr(R)
    elif mn.startswith(("buffer_load", "global_load")):
        ins.kind = "vm"
        if " lds" in (" " + mods) or "load_lds" in mn:
            ins.r = allr(R) | {("s", "m0")}; ins.meta["dma"] = True
        else:
            ins.w = R[0]; ins.r = allr(R[1:])
            if "d16" in mn: ins.r |= R[0]
    elif mn.startswith(("buffer_store", "global_store", "buffer_atomic", "global_atomic")):
        ins.kind = "vm"; ins.r = allr(R)
        data = R[0] if mn.startswith("buffer") else R[1]
        if mn.endswith(("x3", "x4")): ins.meta["wide"] = data
    elif mn.startswith(("buffer_wbl2", "buffer_inv")):
        ins.kind = "vm"
    elif mn.startswith(("s_load", "s_buffer_load", "s_memtime", "s_memrealtime")):
        ins.kind = "sm"; ins.w = R[0]; ins.r = allr(R[1:])
    elif mn == "s_nop":
        ins.kind = "nop"; ins.meta["n"] = int(ops[0], 0) + 1
    elif mn == "s_waitcnt":
        ins.kind = "wait"
    elif mn == "s_barrier":
        ins.kind = "bar"
    elif mn.startswith(("s_cbranch", "s_branch", "s_endpgm", "s_setpc")):
        ins.kind = "br"
    elif mn.startswith(("s_cmp", "s_bitcmp", "s_sleep", "s_setprio")):
        ins.kind = "salu"; ins.r = allr(R)
    elif "saveexec" in mn:
        ins.kind = "salu"; ins.w = R[0] | EXEC; ins.r = allr(R[1:]) | EXEC
    elif mn.startswith("s_"):
        ins.kind = "salu"; ins.w = R[0] if R else set(); ins.r = allr(R[1:])
        if mn.startswith(("s_addk", "s_mulk")): ins.r |= R[0]
    else:
        raise ValueError("unknown instruction: " + t)

def need_states(p, c):
    pk, ck = p.kind, c.kind
    n = 0
    pm = p.meta.get("mn", "") if p.meta else ""
    cm = c.meta.get("mn", "") if c.meta else ""
    isv = lambda s: {x for x in s if x[0] in "va"}
    iss = lambda s: {x for x in s if x[0] == "s"}
    if pk == "valu":
        pw_v, pw_s = isv(p.w), iss(p.w)
        if ck == "mfma" and pw_v & c.r: n = max(n, 2)
        if ck == "mfma" and pw_s & EXEC: n = max(n, 4)
        if ck == "valu":
            if cm.startswith("v_permlane") and pw_v & c.r: n = max(n, 2)
            if cm.startswith(("v_readfirstlane", "v_readlane")) and pw_v & c.r: n = max(n, 1)
            if "dpp" in cm or "row_" in c.meta.get("mods", "") or "quad_perm" in c.meta.get("mods", ""):
                if pw_v & c.r: n = max(n, 2)
                if pw_s & EXEC: n = max(n, 5)
            if re.sub(r"_e(32|64)$", "", pm) in TRANS and pw_v & c.r: n = max(n, 1)
            if pw_s & c.r: n = max(n, 4 if cm.startswith(("v_readlane", "v_writelane")) else 2)
            if cm.startswith("v_cndmask") and len(c.meta["ops"]) >= 4 and pw_s & regs_of(c.meta["ops"][3]): n = max(n, 2)
            if pw_s & EXEC and cm.startswith(("v_readlane", "v_readfirstlane", "v_writelane", "v_permlane")): n = max(n, 4)
            if "sdwa" in pm and pw_v & (c.r | c.w): n = max(n, 1)
        if pm.startswith("v_dot"):
            if ck in ("valu", "mfma", "ds", "vm") and pw_v & (c.r | c.w):
                same = cm == pm
                if same and not (pw_v & set().union(*[regs_of(o) for o in c.meta["ops"][1:3]])): pass
                else: n = max(n, 3)
        if ck == "vm" and pw_s & c.r: n = max(n, 5)
        if ck == "salu" and pw_s & c.r: n = max(n, 1)
        if ck == "br" and pw_s & (VCC | EXEC): n = max(n, 1)
    if pk == "salu":
        if ("s", "m0") in p.w and ck == "vm" and c.meta.get("dma"): n = max(n, 1)
    if pk == "vm" and p.meta.get("wide"):
        if ck in ("valu", "mfma") and p.meta["wide"] & c.w: n = max(n, 2)
        elif ck in ("ds", "vm") and p.meta["wide"] & c.w: n = max(n, 1)
    if pk == "mfma":
        ps = p.meta["passes"]
        D = p.w
        if ck == "mfma":
            if D & (c.meta["a"] | c.meta["b"]): n = max(n, 12 if ps == 8 else 8)
            if D & c.meta["c"]:
                if not (D == c.meta["c"] and ps == c.meta["passes"]): n = max(n, 10 if ps == 8 else 6)
            elif D & c.w: n = max(n, 10 if ps == 8 else 6)
        elif ck in ("valu", "ds", "vm"):
            if D & (c.r | c.w): n = max(n, 12 if ps == 8 else 8)
            if ck == "valu" and p.meta["c"] & c.w: n = max(n, 7 if ps == 8 else 3)
    return n

class Asm:
    def __init__(self):
        self.ins = []
    def e(self, text, tag=None):
        for line in text.split("\n"):
            line = line.strip()
            if line: self.ins.append(Ins(line, tag=tag))
    def wait_vm(self, tag):  self.ins.append(Ins("", kind="wvm", tag=tag))
    def wait_ds(self, tag):  self.ins.append(Ins("", kind="wds", tag=tag))
    def wait_both(self, vtag, dtag):
        self.ins.append(Ins("", kind="wboth", tag=(vtag, dtag)))
    def cond_begin(self): self.ins.append(Ins("", kind="cb"))
    def cond_end(self): self.ins.append(Ins("", kind="ce"))
    def ext(self, l): self.ins.extend(l)
    def take(self):
        l = self.ins; self.ins = []; return l

def resolve(ins):
    out = []; vm = []; ds = []
    def cnt(q, tag):
        tags = tag if isinstance(tag, (list, set)) else [tag]
        idx = [i for i, t in enumerate(q) if t in tags or "*" in tags]
        if not idx: return None
        return len(q) - 1 - idx[-1]
    snap = None
    for x in ins:
        if x.kind == "cb": snap = (list(vm), list(ds)); continue
        if x.kind == "ce":
            assert not vm and not ds, "a conditional block must drain what it issued"
            vm, ds = snap; continue
        if x.kind in ("wvm", "wds", "wboth"):
            vt, dt = (x.tag, None) if x.kind == "wvm" else ((None, x.tag) if x.kind == "wds" else x.tag)
            parts = []
            if vt is not None:
                n = cnt(vm, vt)
                if n is not None:
                    if n > 63: n = 63
                    parts.append(f"vmcnt({n})"); vm = vm[len(vm) - n:] if n else []
            if dt is not None:
                n = cnt(ds, dt)
                if n is not None:
                    if n > 15: n = 15
                    parts.append(f"lgkmcnt({n})"); ds = ds[len(ds) - n:] if n else []
            if parts:
                y = Ins("s_waitcnt " + " ".join(parts)); classify(y); out.append(y)
            continue
        classify(x)
        if x.kind == "vm":
            if x.tag != "UNTRACKED": vm.append(x.tag)
        elif x.kind == "ds": ds.append(x.tag)
        elif x.kind == "sm": ds.append("SMEM")
        elif x.kind == "wait":
            m = re.search(r"vmcnt\((\d+)\)", x.text)
            if m: n = int(m.group(1)); vm = vm[len(vm) - n:] if n and n < len(vm) else ([] if n == 0 else vm)
            m = re.search(r"lgkmcnt\((\d+)\)", x.text)
            if m: n = int(m.group(1)); ds = ds[len(ds) - n:] if n and n < len(ds) else ([] if n == 0 else ds)
        out.append(x)
    return out

def pad(ins, window=20):
    out = []; added = 0
    for c in ins:
        if c.kind in ("label", "dir"):
            out.append(c); continue
        dist = 0; need = 0
        for p in reversed(out):
            if p.kind in ("label", "dir"): continue
            n = need_states(p, c)
            if n - dist > need: need = n - dist
            dist += p.meta["n"] if p.kind == "nop" else 1
            if dist >= window: break
        while need > 0:
            k = min(need, 16)
            y = Ins(f"s_nop {k-1}"); classify(y); out.append(y); need -= k; added += 1
        out.append(c)
    return out, added

def render(ins):
    return "\n".join(("" if x.kind == "label" else "  ") + x.text for x in ins) + "\n"

def merge(main, side, first=0, every=1, per=1):
    out = []; j = 0
    for i, x in enumerate(main):
        out.append(x)
        if i >= first and (i - first) % every == 0:
            out.extend(side[j:j + per]); j += per
    out.extend(side[j:])
    return out
```

```python
from asmlib import *
from gen import *

class Atomic:
    def __init__(self, ins): self.ins = ins

def weave(main, side, every):
    out = []; n = 0; side = list(side)
    for x in main:
        if isinstance(x, Atomic): out.extend(x.ins); n += len(x.ins)
        else: out.append(x); n += 1
        while n >= every and side:
            out.extend(side.pop(0)); n -= every
    return out, side

def spin(a, name, reload_, check):
    b = Asm()
    c = Asm(); check(c); b.ext(c.take())
    b.e(f"s_cbranch_scc1 L_{name}_ok")
    b.cond_begin()
    b.e(f"s_mov_b32 s{sT[7]}, 0x40000\nL_{name}_spin:\ns_sleep 2")
    c = Asm(); reload_(c); b.ext(c.take())
    b.e("s_waitcnt vmcnt(0) lgkmcnt(0)")
    c = Asm(); check(c); b.ext(c.take())
    b.e(f"s_cbranch_scc1 L_{name}_ok\ns_sub_u32 s{sT[7]}, s{sT[7]}, 1\ns_cmp_lg_u32 s{sT[7]}, 0\ns_cbranch_scc1 L_{name}_spin")
    b.cond_end()
    b.e(f"L_{name}_ok:")
    a.ins.append(Atomic(b.take()))

def cmac(a, d, l, x, t):
    a.e(f"v_fma_f32 v{t}, -v{l+1}, v{d+1}, v{x[0]}\nv_fma_f32 v{t+1}, v{l+1}, v{d}, v{x[1]}")
    a.e(f"v_fma_f32 v{d}, v{l}, v{d}, v{t}\nv_fma_f32 v{d+1}, v{l}, v{d+1}, v{t+1}")

def epilogue1(g):
    a = g.a; o = g.o; T = vT
    WS = f"s[{R_WS}:{R_WS+3}]"
    pre = a.take()
    side = g.wb_issue(4) + g.wb_issue(5)
    for k in range(19):
        side.append(g.wb_drain(k))
        if k + 6 < 19: side += g.wb_issue(k + 6)
    vA0 = 11
    a.e(f"v_and_b32 v10, 31, v0\ns_lshl_b32 s{sT[5]}, s{sW}, 2\ns_add_u32 s{sT[5]}, s{sT[5]}, {L_S}\nv_lshl_add_u32 v{vA0}, v10, 4, s{sT[5]}")
    for t in range(5): a.e(f"ds_write_b32 v{vA0}, v{vS[t]} offset:{512*t}", "sw")
    a.e(f"v_lshlrev_b32 v{vA0}, 4, v10\nv_add_u32 v{vA0}, {L_S}, v{vA0}")
    a.e(f"s_lshl_b32 s{sT[5]}, s{sNB}, 16\ns_lshl_b32 s{sT[6]}, s{sW}, 8\ns_add_u32 s{sT[5]}, s{sT[5]}, s{sT[6]}")
    a.e(f"v_lshl_add_u32 v{T}, v232, 10, v233\nv_add_u32 v{vCD[0]}, s{sT[5]}, v{T}\nv_xor_b32 v{vCD[1]}, 64, v{vCD[0]}")
    a.e(f"v_add_u32 v{vCD[2]}, {2*7168}, v{vCD[0]}\nv_add_u32 v{vCD[3]}, {3*7168}, v{vCD[1]}\nv_add_u32 v{vCD[1]}, 7168, v{vCD[1]}")
    a.e(f"v_bfe_u32 v{T}, v0, 1, 3\nv_xor_b32 v{T}, v{T}, v160\nv_lshlrev_b32 v{T+1}, 7, v10\nv_add_u32 v{T+1}, s{sWA}, v{T+1}")
    for s in range(4): a.e(f"v_xor_b32 v{T+2}, {2*s}, v{T}\nv_lshl_add_u32 v{vCR[s]}, v{T+2}, 4, v{T+1}")
    a.wait_ds("sw")
    a.e("s_barrier")
    for t in range(5): a.e(f"ds_read_b128 {r(T+4*t,4)}, v{vA0} offset:{512*t}", f"sr{t}")
    a.wait_vm("stat")
    def chk_stat(c):
        c.e(f"v_cmp_eq_u32 vcc, s{sTAG}, v{vST+2}\nv_cmp_eq_u32 s[22:23], s{sTAG+1}, v{vST+3}\ns_and_b64 vcc, vcc, s[22:23]\ns_cmp_eq_u64 vcc, -1")
    spin(a, "stat", lambda c: c.e(f"buffer_load_dwordx4 v[{vST}:{vST+3}], v14, {WS}, 0 offen sc1"), chk_stat)
    a.e(f"s_lshl_b32 s{sT[5]}, s{sW}, 7\ns_add_u32 s{sT[5]}, s{sT[5]}, {L_RS}\nv_add_u32 v15, s{sT[5]}, v15")
    a.e(f"ds_write_b32 v15, v{vST+1}", "rsw")
    a.e(f"v_lshl_add_u32 v15, v160, 6, s{sT[5]}")
    a.e(f"v_cmp_gt_u32 vcc, 32, v0\nv_and_b32 v{vRF}, 0xffff, v{vST}\nv_lshl_or_b32 v{vRF}, v{vRF}, 16, v{vRF}\nv_lshrrev_b32 v{vRF+1}, 16, v{vST}")
    a.e(f"v_cndmask_b32 v{vRF}, 0, v{vRF}, vcc\nv_cndmask_b32 v{vRF+1}, 0, v{vRF+1}, vcc\nv_mov_b32 v{vRF+2}, 0\nv_mov_b32 v{vRF+3}, 0")
    a.wait_ds("rsw")
    for q in range(4): a.e(f"ds_read_b128 {r(vRSV+4*q,4)}, v15 offset:{16*q}", "rsr")
    a.e(f"v_mul_f32 v{vST}, v{vST+1}, v{vST+1}")
    a.wait_vm("b1")
    for t in range(5):
        x = T + 4 * t; d = vAUG + 4 * t
        a.wait_ds(f"sr{t}")
        a.e(f"v_add_f32 v{x}, v{x}, v{x+1}\nv_add_f32 v{x+2}, v{x+2}, v{x+3}\nv_add_f32 v{x}, v{x}, v{x+2}")
        a.e(f"v_cvt_pk_bf16_f32 v{x+1}, v{x}, v{x}\nv_and_b32 v{x+1}, 0xffff0000, v{x+1}\nv_sub_f32 v{x+1}, v{x}, v{x+1}\nv_cvt_pk_bf16_f32 v{d}, v{x}, v{x+1}")
        a.e(f"v_mov_b32 v{d+1}, {'0' if t < 2 else 'v%d' % vB1[t-2]}\nv_mov_b32 v{d+2}, 0\nv_mov_b32 v{d+3}, 0")
        acc = r(vACC[t], 16)
        if t > 0:
            tp = t - 1; accp = r(vACC[tp], 16); dp = vAUG + 4 * tp
            a.e(f"v_mfma_f32_32x32x16_bf16 {accp}, {r(vRF,4)}, {r(dp,4)}, {accp}" if tp < 2 else f"v_mfma_f32_32x32x16_bf16 {accp}, {r(dp,4)}, {r(vRF,4)}, {accp}")
    a.e(f"s_nop 0\nv_mfma_f32_32x32x16_bf16 {r(vACC[4],16)}, {r(vAUG+16,4)}, {r(vRF,4)}, {r(vACC[4],16)}")
    g.stamp()
    a.wait_ds("rsr")
    RE, IM, UR, UI = vACC[0], vACC[1], vU, vU + 16
    co = r(vCO, 2)
    for i in range(0, 16, 2):
        a.e(f"v_pk_mul_f32 {r(RE+i,2)}, {r(RE+i,2)}, {r(vRSV+i,2)}\nv_pk_mul_f32 {r(IM+i,2)}, {r(IM+i,2)}, {r(vRSV+i,2)}")
    for i in range(0, 16, 2):
        a.e(f"v_pk_mul_f32 {r(UR+i,2)}, {r(RE+i,2)}, {co} op_sel_hi:[1,0]\nv_pk_mul_f32 {r(UI+i,2)}, {r(IM+i,2)}, {co} op_sel_hi:[1,0]")
        a.e(f"v_pk_fma_f32 {r(UR+i,2)}, {r(IM+i,2)}, {co}, {r(UR+i,2)} op_sel:[0,1,0] op_sel_hi:[1,1,1] neg_lo:[1,0,0] neg_hi:[1,0,0]")
        a.e(f"v_pk_fma_f32 {r(UI+i,2)}, {r(RE+i,2)}, {co}, {r(UI+i,2)} op_sel:[0,1,0] op_sel_hi:[1,1,1]")
    vE, vP, vt = 16, 18, 20
    a.e(f"v_mov_b32 v{vE}, v{UR}\nv_mov_b32 v{vE+1}, v{UI}")
    for i in range(1, 16): cmac(a, vE, vLAM, (UR + i, UI + i), vt)
    a.e(f"s_lshl_b32 s{sT[5]}, s{sW}, 9\ns_add_u32 s{sT[5]}, s{sT[5]}, {L_SEG}\nv_lshl_add_u32 v{vA0}, v0, 3, s{sT[5]}")
    a.e(f"ds_write_b64 v{vA0}, {r(vE,2)}", "ew")
    a.e(f"v_lshlrev_b32 v15, 3, v10\nv_add_u32 v15, {L_SEG}, v15\nv_mov_b32 v{vP}, 0\nv_mov_b32 v{vP+1}, 0\ns_lshl_b32 s{sT[5]}, s{sW}, 1")
    a.wait_ds("ew")
    a.e("s_barrier")
    for s in range(7): a.e(f"ds_read_b64 {r(24+2*s,2)}, v15 offset:{256*s}", "er")
    a.e(f"s_lshl_b32 s{sT[6]}, s{sG}, 9\ns_add_u32 s{sT[6]}, s{sT[6]}, {WS_AGG}\nv_lshl_add_u32 v14, v10, 4, s{sT[6]}")
    a.wait_ds("er")
    b = Asm()
    for s in range(7):
        b.e(f"s_cmp_gt_u32 s{sT[5]}, {s}\ns_cselect_b32 exec_lo, -1, 0\ns_cmp_ge_u32 s{sT[5]}, {s}\ns_cselect_b32 exec_hi, -1, 0")
        cmac(b, vP, vL16, (24 + 2 * s, 25 + 2 * s), vt)
    b.e("s_mov_b64 exec, -1")
    b.e(f"s_cmp_lg_u32 s{sW}, 3\ns_cbranch_scc1 L_nopub")
    b.e(f"v_mov_b32 v40, v{vP}\nv_mov_b32 v41, v{vP+1}")
    cmac(b, 40, vL16, (vE, vE + 1), vt)
    b.e(f"v_mov_b32 v42, s{sTAG}\nv_mov_b32 v43, s{sTAG+1}\ns_lshl_b32 s{sT[6]}, s{sC}, 13\ns_mov_b32 exec_lo, 0")
    b.e(f"buffer_store_dwordx4 v[40:43], v14, {WS}, s{sT[6]} offen sc1")
    b.e("s_mov_b64 exec, -1\nL_nopub:")
    blk = b.take()
    for x in blk:
        if x.text.startswith("buffer_store"): x.tag = "UNTRACKED"
    a.ins.append(Atomic(blk))
    g.stamp()
    a.e(f"v_lshlrev_b32 v{vA0}, 4, v0\ns_lshl_b32 s{sT[5]}, s{sT0}, 11\ns_add_u32 s{sT[5]}, s{sT[5]}, s{sHID}\ns_add_u32 s{sT[6]}, s{sT[5]}, 4096")
    rs2 = r(vST, 2)
    for t in range(3):
        A = vACC[2 + t]; O = 24 + 8 * t
        for i in range(0, 16, 2):
            x = T + (i & 2) * 1
            a.e(f"v_pk_mul_f32 {r(x,2)}, {r(A+i,2)}, {rs2} op_sel_hi:[1,0]")
            a.e(f"v_mul_f32 v{x}, v{x}, |v{A+i}|\nv_mul_f32 v{x+1}, v{x+1}, |v{A+i+1}|")
            a.e(f"v_cvt_pk_bf16_f32 v{O+i//2}, v{x}, v{x+1}\nv_pk_max_i16 v{O+i//2}, v{O+i//2}, 0")
            if i in (6, 14):
                s1 = i // 8; off = (2 * t + s1) * 1024
                so = sT[5] if off < 4096 else sT[6]
                a.e(f"buffer_store_dwordx4 {r(O+4*s1,4)}, v{vA0}, {WS}, s{so} offen offset:{off % 4096} sc1", "hf")
    g.stamp()
    part1 = a.take()
    w1, side = weave(part1, side, o.get("ev1", 14))
    a.ext(pre); a.ext(w1)
    while side and sum(1 for grp in side if any(x.kind == "wvm" for x in grp)) > 19 - (o["e3_at"] - 6):
        a.ext(side.pop(0))
    g.stamp()
    pre = a.take()
    a.e(f"s_lshl_b32 s{sT[5]}, s{sW}, 15\nv_lshl_add_u32 v14, v160, 14, v14\nv_add_u32 v14, s{sT[5]}, v14\ns_movk_i32 s{sT[6]}, 0x2000")
    def ld_g(c, tag=None):
        c.e(f"buffer_load_dwordx4 {r(vG,4)}, v14, {WS}, 0 offen sc1", tag)
        c.e(f"buffer_load_dwordx4 {r(vG+4,4)}, v14, {WS}, s{sT[6]} offen sc1", tag)
    ld_g(a, "gat")
    a.e(f"s_lshl_b32 s{sT[4]}, s{sT[3]}, 7\ns_lshl_b32 s{sT[5]}, s{sG}, 3\ns_add_u32 s{sT[4]}, s{sT[4]}, s{sT[5]}\ns_add_u32 s{sT[4]}, s{sT[4]}, {WS_FLAG}")
    a.e(f"v_mov_b32 v42, s{sTAG}\nv_mov_b32 v43, s{sTAG+1}\nv_mov_b32 v44, 0")
    a.wait_vm("gat")
    b = Asm()
    b.e(f"s_mov_b64 exec, 1\nbuffer_store_dwordx2 v[42:43], v44, {WS}, s{sT[4]} offen sc1\ns_mov_b64 exec, -1", "flagF")
    a.ins.append(Atomic(b.take()))
    def chk_g(c):
        c.e(f"v_cmp_eq_u32 vcc, s{sTAG}, v{vG+2}\nv_cmp_eq_u32 s[22:23], s{sTAG+1}, v{vG+3}\nv_cmp_eq_u32 s[24:25], s{sTAG}, v{vG+6}\nv_cmp_eq_u32 s[26:27], s{sTAG+1}, v{vG+7}")
        c.e("s_and_b64 vcc, vcc, s[22:23]\ns_orn2_b64 vcc, vcc, s[18:19]\ns_and_b64 s[24:25], s[24:25], s[26:27]\ns_orn2_b64 s[24:25], s[24:25], s[20:21]")
        c.e("s_and_b64 vcc, vcc, s[24:25]\ns_cmp_eq_u64 vcc, -1")
    spin(a, "gat", ld_g, chk_g)
    for e_ in range(2):
        for k in range(2): a.e(f"v_cndmask_b32 v{vG+4*e_+k}, 0, v{vG+4*e_+k}, s[{18+2*e_}:{19+2*e_}]")
    a.e(f"v_mul_f32 v24, v{vGW0}, v{vG}\nv_mul_f32 v25, v{vGW0}, v{vG+1}\nv_fma_f32 v24, -v{vGW0+1}, v{vG+1}, v24\nv_fma_f32 v25, v{vGW0+1}, v{vG}, v25")
    a.e(f"v_fma_f32 v24, v{vGW1}, v{vG+4}, v24\nv_fma_f32 v25, v{vGW1}, v{vG+5}, v25\nv_fma_f32 v24, -v{vGW1+1}, v{vG+5}, v24\nv_fma_f32 v25, v{vGW1+1}, v{vG+4}, v25")
    a.e(f"s_lshl_b32 s{sT[5]}, s{sW}, 9\ns_add_u32 s{sT[5]}, s{sT[5]}, {L_SEG2}\nv_lshl_add_u32 v14, v0, 3, s{sT[5]}")
    a.e(f"ds_write_b64 v14, v[24:25]", "gw")
    vTW, vTR = 44, 46
    a.e(f"s_lshl_b32 s{sT[5]}, s{sW}, 12\ns_add_u32 s{sT[5]}, s{sT[5]}, {L_TR}")
    a.e(f"v_bfe_u32 v{T}, v0, 1, 2\nv_lshlrev_b32 v{T+1}, 1, v160\nv_xor_b32 v{T}, v{T}, v{T+1}\nv_lshlrev_b32 v{T}, 4, v{T}\nv_lshl_add_u32 v{T}, v10, 6, v{T}")
    a.e(f"v_add_u32 v{vTW}, s{sT[5]}, v{T}\nv_xor_b32 v{vTW+1}, 16, v{vTW}")
    a.wait_ds("gw")
    a.e("s_barrier")
    for s in range(8): a.e(f"ds_read_b64 {r(24+2*s,2)}, v15 offset:{L_SEG2-L_SEG+256*s}", "gr")
    a.e(f"v_and_b32 v{T}, 1, v0\nv_lshlrev_b32 v{T}, 5, v{T}\nv_and_b32 v{T+1}, 16, v0\nv_or_b32 v{T}, v{T}, v{T+1}\nv_and_b32 v{T+1}, 2, v0\nv_lshl_or_b32 v{T}, v{T+1}, 2, v{T}")
    a.e(f"v_and_b32 v{T+1}, 8, v0\nv_lshlrev_b32 v{T+1}, 1, v{T+1}\nv_xor_b32 v{T}, v{T}, v{T+1}")
    a.e(f"v_bfe_u32 v{T+1}, v0, 2, 2\nv_lshl_add_u32 v{T+1}, v160, 3, v{T+1}\nv_lshl_add_u32 v{T}, v{T+1}, 6, v{T}")
    a.e(f"v_add_u32 v{vTR}, s{sT[5]}, v{T}\nv_xor_b32 v{vTR+1}, 32, v{vTR}")
    a.wait_ds("gr")
    for s in range(0, 8, 2): a.e(f"v_pk_add_f32 {r(24+2*s,2)}, {r(24+2*s,2)}, {r(26+2*s,2)}")
    a.e("v_pk_add_f32 v[24:25], v[24:25], v[28:29]\nv_pk_add_f32 v[32:33], v[32:33], v[36:37]\nv_pk_add_f32 v[24:25], v[24:25], v[32:33]")
    cmac(a, 24, vL16S, (vP, vP + 1), vt)
    pr, pi = 24, 25
    for i in range(16):
        a.e(f"v_fma_f32 v{UR+i}, -v{vLAM+1}, v{pi}, v{UR+i}\nv_fma_f32 v{UI+i}, v{vLAM+1}, v{pr}, v{UI+i}")
        a.e(f"v_fma_f32 v{UR+i}, v{vLAM}, v{pr}, v{UR+i}\nv_fma_f32 v{UI+i}, v{vLAM}, v{pi}, v{UI+i}")
        pr, pi = UR + i, UI + i
        if i & 1:
            a.e(f"v_cvt_pk_bf16_f32 v{48+i//2}, v{UR+i-1}, v{UR+i}\nv_cvt_pk_bf16_f32 v{56+i//2}, -v{UI+i-1}, -v{UI+i}")
        if i in (7, 15):
            k = i // 8
            a.e(f"ds_write_b128 v{vTW+k}, {r(48+4*k,4)}\nds_write_b128 v{vTW+k}, {r(56+4*k,4)} offset:2048", "tw")
    a.e(f"s_lshl_b32 s{sT[5]}, s{sG}, 12\ns_add_u32 s{sT[5]}, s{sT[5]}, s{sHID}\ns_add_u32 s{sT[5]}, s{sT[5]}, {86*1024}")
    a.wait_ds("tw")
    for q in range(4):
        for u in range(2):
            a.e(f"ds_read_b64_tr_b16 {r(64+4*q+2*u,2)}, v{vTR+u} offset:{2048*(q>>1)+1024*(q&1)+256*u}", f"tr{q}")
    for q in range(4):
        a.wait_ds(f"tr{q}")
        a.e(f"buffer_store_dwordx4 {r(64+4*q,4)}, v{vA0}, {WS}, s{sT[5]} offen offset:{1024*q} sc1", "hs")
    g.stamp()
    part2 = a.take()
    w2, side = weave(part2, side, o.get("ev2", 14))
    a.ext(pre); a.ext(w2)
    g.side_left = side

def phase2(g):
    a = g.a; o = g.o; T = vT
    WS = f"s[{R_WS}:{R_WS+3}]"
    side = g.side_left
    vA, vFL, vXO, vOO, vSO = [2, 3], 4, 5, 6, 7
    vR_, vD, vB2, vF = 80, 8, 9, 196
    RING = o["ring"]; A0 = 200
    pre = a.take()
    a.e(f"s_lshr_b32 s{sT[0]}, s{sW}, 1\ns_lshl_b32 s{sT[1]}, s{sRB}, 1\ns_add_u32 s{sT[1]}, s{sT[1]}, s{sT[0]}")
    a.e(f"s_mul_i32 s{sT[2]}, s{sT[1]}, {150*1024}\ns_add_u32 s{sT[2]}, s{sT[2]}, {WS_HID}\nv_add_u32 v{vA[0]}, s{sT[2]}, v11")
    a.e(f"s_xor_b32 s{sT[2]}, s{sT[1]}, 1\ns_mul_i32 s{sT[2]}, s{sT[2]}, {150*1024}\ns_add_u32 s{sT[2]}, s{sT[2]}, {WS_HID}\nv_add_u32 v{vA[1]}, s{sT[2]}, v11")
    a.e(f"s_lshl_b32 s{sT[2]}, s{sRB}, 8\ns_add_u32 s{sT[2]}, s{sT[2]}, {WS_FLAG}\nv_lshl_add_u32 v{vFL}, v10, 3, s{sT[2]}")
    a.e(f"s_and_b32 s{sT[2]}, s{sW}, 1\ns_lshl_b32 s{sT[2]}, s{sT[2]}, 5\ns_lshl_b32 s{sT[5]}, s{sNB}, 6\ns_add_u32 s{sT[2]}, s{sT[2]}, s{sT[5]}")
    a.e(f"v_add_u32 v{T}, s{sT[2]}, v10\nv_lshlrev_b32 v{T+1}, 1, v{T}")
    a.e(f"s_lshl_b32 s{sT[5]}, s{sT[1]}, 5\nv_lshl_add_u32 v{T+2}, v160, 4, s{sT[5]}")
    a.e(f"v_lshl_add_u32 v{vXO}, v{T+2}, 10, v{T+1}\nv_lshlrev_b32 v{vOO}, 1, v{vXO}")
    a.e(f"s_lshl_b32 s{sT[5]}, s{sT[1]}, 9\ns_add_u32 s{sT[5]}, s{sT[5]}, {WS_STAT}\nv_lshl_add_u32 v{vSO}, v10, 4, s{sT[5]}")
    for i in range(16): a.e(f"v_mov_b32 v{vR_+i}, 0")
    a.e(f"global_load_ushort v{vD}, v{T+1}, s[10:11]\nglobal_load_ushort v{vB2}, v{T+1}, s[14:15]", "db")
    setup = a.take()
    w, side = weave(setup, side, 8)
    a.ext(pre); a.ext(w)
    sent = False
    def flagS():
        a.wait_vm("hs")
        a.e(f"s_add_u32 s{sT[4]}, s{sT[4]}, 8192\ns_mov_b64 exec, 1\nbuffer_store_dwordx2 v[42:43], v13, {WS}, s{sT[4]} offen sc1\ns_mov_b64 exec, -1".replace("v13", "v%d" % (T + 3)), "flagS")
    a.e(f"v_mov_b32 v{T+3}, 0")
    def ld_f(c, tag=None, off=0): c.e(f"buffer_load_dwordx2 {r(vF,2)}, v{vFL}, {WS}, {off} offen sc1", tag)
    def chk_f(c): c.e(f"v_cmp_eq_u32 vcc, s{sTAG}, v{vF}\nv_cmp_eq_u32 s[22:23], s{sTAG+1}, v{vF+1}\ns_and_b64 vcc, vcc, s[22:23]\ns_cmp_eq_u64 vcc, -1")
    nissue = [i for i, grp in enumerate(side) if any("lds" in x.text for x in grp)]
    cut = (nissue[-1] + 1) if nissue else 0
    for grp in side[:cut]: a.ext(grp)
    ld_f(a, "pollF")
    for i in range(16):
        if i % 4 == 0: a.e(f"s_movk_i32 s{sT[5]}, {1024*i}")
        a.e(f"buffer_load_short_d16_hi v{vR_+i}, v{vXO}, s[{R_X}:{R_X+3}], s{sT[5]} offen offset:{1024*(i%4)}", "xt")
    flagS()
    for grp in side[cut:]: a.ext(grp)
    g.stamp()
    a.wait_vm("pollF")
    flat = Asm(); spin(flat, "pf", ld_f, chk_f); a.ext(flat.ins[0].ins)
    a.wait_ds("*")
    a.e("s_barrier")
    g.stamp()
    sB = sT[5]
    NK = 38
    def aload(k):
        b = Asm()
        if k < 22:
            if k % 4 == 0:
                b.e(f"s_mul_i32 s{sB}, s{sW}, {22*1024}" if k == 0 else f"s_add_u32 s{sB}, s{sB}, 4096")
                if k == 20: b.e(f"s_min_u32 s{sB}, s{sB}, {84*1024}")
            off = (k % 4) * 1024
        else:
            kk = k - 22
            if kk % 4 == 0:
                b.e(f"s_lshl_b32 s{sB}, s{sW}, 14\ns_add_u32 s{sB}, s{sB}, {86*1024}" if kk == 0 else f"s_add_u32 s{sB}, s{sB}, 4096")
            off = (kk % 4) * 1024
        R = A0 + 8 * (k % RING)
        pre = b.take()
        b.e(f"buffer_load_dwordx4 {r(R,4)}, v{vA[0]}, {WS}, s{sB} offen offset:{off} sc1", f"a{k}")
        l0 = pre + b.take()
        b.e(f"buffer_load_dwordx4 {r(R+4,4)}, v{vA[1]}, {WS}, s{sB} offen offset:{off} sc1", f"a{k}")
        return [l0, b.take()]
    for k in range(RING - 1):
        for grp in aload(k): a.ext(grp)
    a.e(f"buffer_load_dwordx2 {r(T+4,2)}, v{vSO}, {WS}, 0 offen sc1", "st2")
    main = a.take()
    a.wait_vm("st2")
    a.e(f"v_lshlrev_b32 v{T+4}, 16, v{T+4}\nv_lshl_add_u32 v{T+6}, v10, 3, s{sWA}")
    a.e(f"ds_write_b64 v{T+6}, {r(T+4,2)}", "s2w")
    a.e(f"v_lshl_add_u32 v{T+6}, v160, 7, s{sWA}\nv_lshlrev_b32 v{vD}, 16, v{vD}\nv_lshlrev_b32 v{vB2}, 16, v{vB2}")
    a.wait_ds("s2w")
    for q in range(8): a.e(f"ds_read_b128 {r(144+4*q,4)}, v{T+6} offset:{16*q}", "s2r")
    a.e(f"s_mul_i32 s{sT[6]}, s{sW}, 12288\ns_add_u32 s{sT[6]}, s{sT[6]}, {L_RED}\nv_add_u32 v14, s{sT[6]}, v11")
    for q in range(1, 4):
        a.e(f"s_xor_b32 s{sT[6]}, s{sW}, {q}\ns_mul_i32 s{sT[6]}, s{sT[6]}, 12288\ns_add_u32 s{sT[6]}, s{sT[6]}, {L_RED+4096*(q-1)}\nv_add_u32 v{T+7+q}, s{sT[6]}, v11")
    a.wait_ds("s2r")
    for i in range(16):
        x = vR_ + i; nm = 144 + 2 * i
        a.e(f"v_add_f32 v{nm}, v{x}, v{nm}\nv_add_f32 v{x}, v{x}, v{vB2}\nv_mul_f32 v{nm}, v{nm}, v{nm+1}\nv_fma_f32 v{x}, v{nm}, v{vD}, v{x}")
    fill = a.take()
    a.ext(main)
    kS, kC = o.get("kS", 9), o.get("kC", 16)
    assert kC < 22 - (RING - 1) + 1
    for k in range(NK):
        ld = aload(k + RING - 1) if k + RING - 1 < NK else [[], []]
        if k == kC:
            a.wait_vm("pollS")
            flat = Asm(); spin(flat, "ps", lambda c: ld_f(c, None, f"s{sT[2]}"), chk_f); a.ext(flat.ins[0].ins)
            a.e(f"s_lshl_b32 s{sT[6]}, s{sRB}, 8\ns_lshl_b32 s{sT[7]}, s{sNB}, 2\ns_or_b32 s{sT[6]}, s{sT[6]}, s{sT[7]}\ns_or_b32 s{sT[6]}, s{sT[6]}, s{sW}\ns_cmp_lg_u32 s{sT[6]}, {31*256}\ns_cbranch_scc1 L_noadv")
            a.e(f"s_mov_b64 exec, 1")
            a.e(f"buffer_store_dword v{vF}, v{T+3}, {WS}, 0 offen sc1", "UNTRACKED")
            a.e(f"s_mov_b64 exec, -1\nL_noadv:")
        R = A0 + 8 * (k % RING)
        a.wait_vm(f"a{k}")
        idx = 2 * k
        for q in range(4):
            m, n = q >> 1, q & 1
            acc = r(16 + 16 * q, 16)
            a.e(f"v_mfma_f32_32x32x16_bf16 {acc}, {r(R+4*m,4)}, {bfrag(idx+n)}, {'0' if k == 0 else acc}")
            if q == 0: a.ext(ld[0])
            if q == 2: a.ext(ld[1])
            if q == 3 and k == kS:
                a.e(f"s_movk_i32 s{sT[2]}, 0x2000"); ld_f(a, "pollS", f"s{sT[2]}")
            if k >= 6 and q in (1, 3):
                a.ext(fill[:3]); fill = fill[3:]
    assert not fill
    g.stamp()
    for q in range(1, 4):
        for j in range(4): a.e(f"ds_write_b128 v{T+7+q}, {r(16+16*q+4*j,4)} offset:{1024*j}", "rw")
    for i in range(0, 16, 2): a.e(f"v_pk_add_f32 {r(16+i,2)}, {r(16+i,2)}, {r(vR_+i,2)}")
    a.wait_ds("rw")
    a.e("s_barrier")
    for j in range(4):
        for q in range(3): a.e(f"ds_read_b128 {r(A0+16*q+4*j,4)}, v14 offset:{4096*q+1024*j}", f"rr{j}")
    for j in range(4):
        a.wait_ds(f"rr{j}")
        for i in (4 * j, 4 * j + 2):
            a.e(f"v_pk_add_f32 {r(A0+i,2)}, {r(A0+i,2)}, {r(A0+16+i,2)}\nv_pk_add_f32 {r(16+i,2)}, {r(16+i,2)}, {r(A0+32+i,2)}")
            a.e(f"v_pk_add_f32 {r(16+i,2)}, {r(16+i,2)}, {r(A0+i,2)}")
        for i in range(4 * j, 4 * j + 4):
            if i % 2 == 0: a.e(f"s_mov_b32 s{sT[5]}, {2048*i}")
            a.e(f"buffer_store_dword v{16+i}, v{vOO}, s[{R_OUT}:{R_OUT+3}], s{sT[5]} offen offset:{2048*(i%2)}", "out")
    g.stamp()
```

```python
import sys, os
sys.path.insert(0, os.path.dirname(os.path.abspath(__file__)))
from asmlib import *

NAME = "parallel_sum__ssm_conv_s5__dense_activation_squared_relu__prompt"
KERN = NAME + "_kernel"

WS_AGG, WS_FLAG, WS_STAT, WS_DIAG, WS_HID = 0x1000, 0x40000, 0x50000, 0x80000, 0x100000
WS_SIZE = WS_HID + 64 * 150 * 1024
L_WAVE = 24576
L_BS, L_WF, L_MISC = 98304, 122880, 159744
L_S, L_RS = L_MISC, L_MISC + 2560
L_SEG, L_SEG2, L_TR, L_RED = 118784, 120832, 98304, 98304
LDS_BYTES = 163840
S_X, S_LRE, S_LIM, S_BRE, S_BIM, S_CRE, S_CIM, S_LDT = 4, 6, 8, 10, 12, 14, 16, 18
S_D, S_W1, S_B1, S_W2, S_B2, S_OUT, S_DBG, S_WS = 20, 24, 26, 28, 30, 32, 34, 36
R_X, R_BRE, R_BIM, R_W1, R_CRE, R_CIM, R_W2, R_WS, R_OUT = 40, 44, 48, 52, 56, 60, 64, 68, 72
sW, sC, sG, sRB, sNB, sT0 = 76, 77, 78, 79, 80, 81
sWA = 82
sM_B, sM_F = 83, 86
sTAG = 84
sT = [87, 88, 89, 90, 91, 92, 93, 94, 95]
sONE = 96
sHID = 97
sK0, sK1 = 98, 99
vL = 0
vXD, vBD, vFD = [2, 3, 4, 5], 6, [7, 8, 9]
vSUM, vSQ = 10, 11
vW2R = [12, 13]
vACC = [16, 32, 48, 64, 80]
vBUF = [96, 120]
vXR, vBR, vFR = [144, 145, 146, 147], [148, 149, 150, 151], [152, 153, 154, 155]
vS = [200, 204, 208, 212, 216]
vSEL = 156
vB1 = [161, 174, 175]
vLAM, vL16, vL16S, vCO, vGW0, vGW1 = 162, 164, 166, 168, 170, 172
vW2D = [176, 177, 178, 179]
vT = 180
vU, vRSV, vG = 200, 232, 248
vCD, vCR = vBR, vXR
vAUG, vRF = 96, 116
vPAR = 220
vST = 248

def r(n, k=1): return f"v{n}" if k == 1 else f"v[{n}:{n+k-1}]"
def sr(n, k=1): return f"s{n}" if k == 1 else f"s[{n}:{n+k-1}]"
def bfrag(idx): return f"a[{4*idx}:{4*idx+3}]" if idx < 64 else r(96 + 4 * (idx - 64), 4)
def bhalf(idx, u): return f"a[{4*idx+2*u}:{4*idx+2*u+1}]" if idx < 64 else r(96 + 4 * (idx - 64) + 2 * u, 2)

class Gen:
    def __init__(self, **o):
        self.o = dict(diag=0, csum=1, stop=None, e3_at=14, ring=6, codepf=1, map48=1)
        self.o.update(o)
        self.a = Asm()
        self.nstamp = 0
    def stamp(self):
        if not self.o["diag"]: return
        a = self.a
        a.e("s_waitcnt lgkmcnt(0)")
        a.e("s_memtime s[100:101]")
        a.e("s_waitcnt lgkmcnt(0)")
        a.e(f"v_writelane_b32 v1, s100, {self.nstamp}")
        self.nstamp += 1
    def srd(self, R, P, nbytes):
        a = self.a
        a.e(f"s_mov_b32 s{R}, s{P}\ns_mov_b32 s{R+1}, s{P+1}\ns_mov_b32 s{R+2}, {nbytes}\ns_mov_b32 s{R+3}, 0x20000")

    def p1_dma(self, st):
        slot = st % 3; tag = f"st{st}"; g = []
        b = Asm()
        for i in range(4):
            if i == 0:
                b.e(f"s_add_u32 m0, s{sWA}, {slot*4096}")
                b.e(f"s_movk_i32 s{sK0}, {st*128}")
            b.e(f"buffer_load_dwordx4 v{vXD[i]}, s[{R_X}:{R_X+3}], s{sK0} offen offset:{1024*i} lds", tag)
            g.append(b.take())
        b.e(f"s_add_u32 m0, s{sM_B}, {slot*8192}\ns_mov_b32 s{sK1}, {st*176128}")
        b.e(f"buffer_load_dwordx4 v{vBD}, s[{R_BRE}:{R_BRE+3}], s{sK0} offen lds", tag); g.append(b.take())
        b.e(f"s_add_u32 m0, s{sM_B}, {slot*8192+4096}\ns_nop 0")
        b.e(f"buffer_load_dwordx4 v{vBD}, s[{R_BIM}:{R_BIM+3}], s{sK0} offen lds", tag); g.append(b.take())
        for i in range(3):
            if i == 0: b.e(f"s_add_u32 m0, s{sM_F}, {slot*12288}\ns_nop 0")
            b.e(f"buffer_load_dwordx4 v{vFD[i]}, s[{R_W1}:{R_W1+3}], s{sK1} offen offset:{1024*i} lds", tag)
            g.append(b.take())
        return g
    def p1_reads(self, st, jj):
        slot = st % 3; B = vBUF[jj & 1]; b = Asm(); t = f"r{st}_{jj}_"
        b.e(f"ds_read_b128 {r(B,4)}, v{vXR[jj]} offset:{slot*4096}", t + "0")
        b.e(f"ds_read_b128 {r(B+4,4)}, v{vBR[jj]} offset:{slot*8192}", t + "0")
        b.e(f"ds_read_b128 {r(B+8,4)}, v{vBR[jj]} offset:{slot*8192+4096}", t + "1")
        for j in range(3):
            for u in range(2):
                b.e(f"ds_read_b64_tr_b16 {r(B+12+4*j+2*u,2)}, v{vFR[jj]} offset:{slot*12288+768*u+64*j}", t + str(2 + j))
        return b.take()

    RING = [3, 4, 5, 2, 0, 1]
    def unit_desc(self, k):
        if k < 11: return ("f", k)
        k -= 11
        return ("c", k >> 2, (k >> 1) & 1, k & 1)
    def wb_issue(self, k):
        d = self.unit_desc(k); slot = self.RING[k % 6]; g = []; b = Asm(); tag = f"u{k}"
        if k >= 6: b.wait_ds(f"ur{k-6}")
        b.e(f"s_add_u32 m0, s{sWA}, {slot*4096}")
        if d[0] == "f":
            b.e(f"s_mov_b32 s{sK0}, {d[1]*32768}")
            for i in range(4):
                b.e(f"buffer_load_dwordx4 v{vW2D[i]}, s[{R_W2}:{R_W2+3}], s{sK0} offen offset:{1024*i} lds", tag); g.append(b.take())
        else:
            _, cb, mat, n = d
            b.e(f"s_xor_b32 s{sK0}, s{sT[8]}, {n*32768+cb*128}")
            R = R_CIM if mat else R_CRE
            for i in range(4):
                b.e(f"buffer_load_dwordx4 v{vCD[i]}, s[{R}:{R+3}], s{sK0} offen offset:{1024*i} lds", tag); g.append(b.take())
        return g
    def wb_drain(self, k):
        d = self.unit_desc(k); slot = self.RING[k % 6]; b = Asm(); tag = f"ur{k}"
        b.wait_vm(f"u{k}")
        if d[0] == "f":
            for s1 in range(2):
                for n in range(2):
                    for u in range(2):
                        b.e(f"ds_read_b64_tr_b16 {bhalf(2*(2*d[1]+s1)+n, u)}, v{vW2R[n]} offset:{slot*4096+(16*s1+8*u)*128}", tag)
        else:
            _, cb, mat, n = d
            for s in range(4):
                ks = 4 * (2 * cb + (s >> 1)) + 2 * mat + (s & 1)
                b.e(f"ds_read_b128 {bfrag(44+2*ks+n)}, v{vCR[s]} offset:{slot*4096}", tag)
        return b.take()

    def cpow(self, dst, vn, a_, b_, t):
        a = self.a
        if vn is None:
            a.e(f"v_exp_f32 v{t}, v{a_}\nv_fract_f32 v{t+1}, v{b_}")
        else:
            a.e(f"v_mul_f32 v{t}, {vn}, v{a_}\nv_mul_f32 v{t+1}, {vn}, v{b_}\nv_exp_f32 v{t}, v{t}\nv_fract_f32 v{t+1}, v{t+1}")
        a.e(f"v_cos_f32 v{dst}, v{t+1}\nv_sin_f32 v{dst+1}, v{t+1}")
        a.e(f"v_mul_f32 v{dst}, v{dst}, v{t}\nv_mul_f32 v{dst+1}, v{dst+1}, v{t}")

    def prologue(self):
        a = self.a; o = self.o; T = vT
        a.e("s_cmp_ge_u32 s2, 256\ns_cbranch_scc1 L_end")
        for R, off in [(R_X, 0), (R_WS, 128), (R_BRE, 24), (R_BIM, 32), (R_W1, 80)]:
            a.e(f"s_load_dwordx2 s[{R}:{R+1}], s[0:1], {off}")
        a.e("s_load_dwordx4 s[4:7], s[0:1], 8")
        a.e("s_load_dwordx4 s[8:11], s[0:1], 56")
        a.e("s_load_dwordx2 s[12:13], s[0:1], 88")
        a.e("s_load_dwordx2 s[14:15], s[0:1], 104")
        for R, off in [(R_CRE, 40), (R_CIM, 48), (R_W2, 96), (R_OUT, 112)]:
            a.e(f"s_load_dwordx2 s[{R}:{R+1}], s[0:1], {off}")
        if o["diag"]: a.e("s_memrealtime s[38:39]\ns_memtime s[100:101]\nv_mov_b32 v1, 0")
        a.e(f"v_lshrrev_b32 v{T}, 6, v0\nv_and_b32 v0, 63, v0")
        a.e(f"s_and_b32 s{sT[0]}, s2, 7\ns_lshr_b32 s{sT[1]}, s2, 3")
        a.e(f"v_readfirstlane_b32 s{sW}, v{T}")
        if o["codepf"]:
            a.e("s_getpc_b64 s[16:17]")
            a.e("L_pc:")
            a.e(f"s_lshl_b32 s{sT[2]}, s{sT[1]}, 10\nv_lshlrev_b32 v{T+1}, 4, v0\nv_add_u32 v{T+1}, s{sT[2]}, v{T+1}")
            a.e(f"v_min_u32 v{T+1}, L_end-L_pc-16, v{T+1}")
            a.e(f"global_load_dwordx4 v[{vG+4}:{vG+7}], v{T+1}, s[16:17]", "pf")
        if o["map48"]:
            a.e(f"s_lshr_b32 s{sC}, s{sT[0]}, 1\ns_lshl_b32 s{sC}, s{sC}, 2\ns_lshr_b32 s{sT[2]}, s{sT[1]}, 3\ns_add_u32 s{sC}, s{sC}, s{sT[2]}")
            a.e(f"s_and_b32 s{sG}, s{sT[0]}, 1\ns_lshl_b32 s{sG}, s{sG}, 3\ns_and_b32 s{sNB}, s{sT[1]}, 7\ns_add_u32 s{sG}, s{sG}, s{sNB}")
        else:
            a.e(f"s_lshr_b32 s{sT[2]}, s{sT[1]}, 4\ns_lshl_b32 s{sC}, s{sT[0]}, 1\ns_add_u32 s{sC}, s{sC}, s{sT[2]}\ns_and_b32 s{sG}, s{sT[1]}, 15")
            a.e(f"s_and_b32 s{sNB}, s{sT[1]}, 7\ns_lshr_b32 s{sT[2]}, s{sT[1]}, 3")
        a.e(f"s_lshl_b32 s{sRB}, s{sT[0]}, 2\ns_add_u32 s{sRB}, s{sRB}, s{sT[2]}")
        a.e(f"s_mul_i32 s{sT0}, s{sG}, 3\ns_min_u32 s{sT0}, s{sT0}, 40")
        a.e(f"s_mul_i32 s{sWA}, s{sW}, {L_WAVE}")
        a.e(f"s_lshl_b32 s{sM_B}, s{sW}, 10\ns_add_u32 s{sM_B}, s{sM_B}, {L_BS}")
        a.e(f"s_mul_i32 s{sM_F}, s{sW}, 3072\ns_add_u32 s{sM_F}, s{sM_F}, {L_WF}")
        for R, nb in [(R_X, 2048 * 1024), (R_BRE, 512 * 1024), (R_BIM, 512 * 1024), (R_W1, 512 * 2752), (R_WS, WS_SIZE),
                      (R_CRE, 512 * 1024), (R_CIM, 512 * 1024), (R_W2, 1376 * 1024), (R_OUT, 2048 * 2048)]:
            a.e(f"s_mov_b32 s{R+2}, {nb}\ns_mov_b32 s{R+3}, 0x20000")
        vJ, vCX, vH, vR = 232, 233, 160, 235
        a.e(f"v_lshrrev_b32 v{vJ}, 3, v0\nv_lshrrev_b32 v{T+2}, 4, v0\nv_xor_b32 v{vCX}, v0, v{T+2}\nv_and_b32 v{vCX}, 7, v{vCX}\nv_lshlrev_b32 v{vCX}, 4, v{vCX}")
        a.e(f"v_lshrrev_b32 v{vH}, 5, v0\nv_and_b32 v{vR}, 31, v0")
        a.e(f"s_lshl_b32 s{sT[5]}, s{sC}, 4\ns_add_u32 s{sT[5]}, s{sT[5]}, s{sG}\ns_lshl_b32 s{sT[5]}, s{sT[5]}, 2\ns_add_u32 s{sT[5]}, s{sT[5]}, s{sW}\ns_lshl_b32 s{sT[5]}, s{sT[5]}, 1")
        a.e(f"v_add_u32 v236, s{sT[5]}, v{vH}\nv_lshlrev_b32 v237, 10, v236\nv_lshl_add_u32 v237, v{vR}, 4, v237")
        a.e(f"s_lshl_b32 s{sT[3]}, s{sC}, 2\ns_add_u32 s{sT[3]}, s{sT[3]}, s{sW}")
        a.e(f"s_lshl_b32 s{sT[4]}, s{sT[3]}, 15")
        a.e(f"v_lshlrev_b32 v{T+2}, 4, v{vH}\nv_and_or_b32 v{T+2}, v{vJ}, 3, v{T+2}")
        a.e(f"v_lshl_add_u32 v{T+2}, v{T+2}, 10, v{vCX}\nv_add_u32 v{vXD[0]}, s{sT[4]}, v{T+2}")
        a.e(f"v_xor_b32 v{vXD[1]}, 64, v{vXD[0]}\nv_add_u32 v{vXD[2]}, {2*3072}, v{vXD[0]}\nv_add_u32 v{vXD[3]}, {3*3072}, v{vXD[1]}\nv_add_u32 v{vXD[1]}, 3072, v{vXD[1]}")
        a.e(f"s_lshl_b32 s{sT[5]}, s{sG}, 2\ns_add_u32 s{sT[5]}, s{sT[5]}, s{sW}\ns_lshl_b32 s{sT[5]}, s{sT[5]}, 13")
        a.e(f"s_and_b32 s{sT[6]}, s{sW}, 1\ns_lshl_b32 s{sT[8]}, s{sT[6]}, 15\ns_lshl_b32 s{sT[6]}, s{sT[6]}, 6")
        a.e(f"v_xor_b32 v{T+2}, s{sT[6]}, v{vCX}\nv_lshl_add_u32 v{T+2}, v{vJ}, 10, v{T+2}\nv_add_u32 v{vBD}, s{sT[5]}, v{T+2}")
        a.e(f"s_mul_i32 s{sT[5]}, s{sW}, 192\ns_lshl_b32 s{sT[7]}, s{sT0}, 6\ns_mov_b32 s{sK0}, 43691\ns_movk_i32 s{sK1}, 2752")
        assert all((q * 43691) >> 19 == q // 12 for q in range(768))
        for ii in range(3):
            a.e(f"v_add_u32 v{T+2}, s{sT[5]}, v0")
            if ii: a.e(f"v_add_u32 v{T+2}, {64*ii}, v{T+2}")
            a.e(f"v_mul_u32_u24 v{T+3}, s{sK0}, v{T+2}\nv_lshrrev_b32 v{T+3}, 19, v{T+3}")
            a.e(f"v_mul_u32_u24 v{T+4}, 12, v{T+3}\nv_sub_u32 v{T+4}, v{T+2}, v{T+4}\nv_lshlrev_b32 v{T+4}, 4, v{T+4}")
            a.e(f"v_mad_u32_u24 v{T+4}, v{T+3}, s{sK1}, v{T+4}\nv_add_u32 v{vFD[ii]}, s{sT[7]}, v{T+4}")
            if ii: a.e(f"v_subrev_u32 v{vFD[ii]}, {1024*ii}, v{vFD[ii]}")
        a.e(f"s_lshl_b32 s{sT[5]}, s{sG}, 6\nv_lshl_add_u32 v238, v{vR}, 1, s{sT[5]}\nv_lshl_add_u32 v239, v{vR}, 1, s{sT[7]}")
        a.e(f"s_mov_b32 s{sONE}, 0x3f803f80\nv_mov_b32 v{vSUM}, 0\nv_mov_b32 v{vSQ}, 0")
        a.e("s_waitcnt lgkmcnt(0)")
        if o["diag"]:
            a.e("v_writelane_b32 v1, s100, 0"); self.nstamp = 1; self.stamp()
        a.e(f"s_load_dword s{sTAG}, s[{R_WS}:{R_WS+1}], 0")
        a.e(f"buffer_load_dwordx4 v[240:243], v237, s[{R_X}:{R_X+3}], 0 offen", "srow")
        a.e(f"buffer_load_dwordx4 v[244:247], v237, s[{R_X}:{R_X+3}], 0 offen offset:512", "srow")
        main = a.take()
        vQ = T + 3
        a.e(f"v_bfe_u32 v{vQ}, v0, 1, 3\nv_xor_b32 v{vQ}, v{vQ}, v{vH}")
        a.e(f"v_lshlrev_b32 v{T+4}, 7, v{vR}")
        a.e(f"v_bfe_u32 v{T+11}, v0, 2, 2\nv_lshl_add_u32 v{T+11}, v{vH}, 3, v{T+11}\nv_mul_u32_u24 v{T+11}, 192, v{T+11}")
        a.e(f"v_bfe_u32 v{T+12}, v0, 4, 1\nv_lshlrev_b32 v{T+12}, 5, v{T+12}\nv_and_b32 v{T+13}, 3, v0\nv_lshl_add_u32 v{T+12}, v{T+13}, 3, v{T+12}")
        a.e(f"v_add_u32 v{T+11}, v{T+11}, v{T+12}")
        for jj in range(4):
            a.e(f"s_add_u32 s{sT[5]}, s{sW}, {jj}\ns_and_b32 s{sT[5]}, s{sT[5]}, 3\ns_lshl_b32 s{sT[6]}, s{sT[5]}, 1\ns_mul_i32 s{sT[5]}, s{sT[5]}, 3072\ns_add_u32 s{sT[5]}, s{sT[5]}, {L_WF}")
            a.e(f"v_xor_b32 v{T+13}, s{sT[6]}, v{vQ}\nv_lshl_add_u32 v{T+13}, v{T+13}, 4, v{T+4}")
            a.e(f"v_add_u32 v{vXR[jj]}, s{sWA}, v{T+13}\nv_add_u32 v{vBR[jj]}, {L_BS}, v{T+13}\nv_add_u32 v{vFR[jj]}, s{sT[5]}, v{T+11}")
        a.e(f"v_lshrrev_b32 v{T+13}, 2, v0\nv_xor_b32 v{T+13}, v{T+13}, v0\nv_and_b32 v{T+13}, 4, v{T+13}\nv_cmp_eq_u32 vcc, 0, v{T+13}\nv_mov_b32 v{T+14}, s{sONE}")
        a.e(f"s_mul_i32 s{sHID}, s{sT[3]}, {150*1024}\ns_add_u32 s{sHID}, s{sHID}, {WS_HID}")
        a.e(f"v_cndmask_b32 v{vSEL}, 0, v{T+14}, vcc\nv_mov_b32 v{vSEL+1}, v{vSEL}\nv_mov_b32 v{vSEL+2}, v{vSEL}\nv_mov_b32 v{vSEL+3}, v{vSEL}")
        setup = a.take()
        d0 = self.p1_dma(0)
        a.ext(main)
        per = (len(setup) + 8) // 9
        for k, grp in enumerate(d0):
            a.ext(grp); a.ext(setup[k * per:(k + 1) * per])
        a.e(f"global_load_ushort v{vPAR}, v238, s[8:9]", "par")
        a.e(f"global_load_ushort v{vPAR+1}, v238, s[4:5]", "par")
        a.e(f"global_load_ushort v{vPAR+2}, v238, s[6:7]", "par")
        for j in range(3): a.e(f"global_load_ushort v{vB1[j]}, v239, s[12:13] offset:{64*j}", "b1")
        main = a.take()
        a.wait_vm("srow")
        for k in range(8): a.e(f"v_dot2c_f32_bf16 v{vSUM}, s{sONE}, v{240+k}\nv_dot2c_f32_bf16 v{vSQ}, v{240+k}, v{240+k}")
        for sh in ("row_shr:1", "row_shr:2", "row_shr:4", "row_shr:8"):
            for x in (vSUM, vSQ): a.e(f"v_add_f32_dpp v{x}, v{x}, v{x} {sh} row_mask:0xf bank_mask:0xf bound_ctrl:0")
        for x in (vSUM, vSQ): a.e(f"v_add_f32_dpp v{x}, v{x}, v{x} row_bcast:15 row_mask:0xa bank_mask:0xf")
        a.e(f"v_mul_f32 v{vSUM}, 0x3b000000, v{vSUM}\nv_mul_f32 v{vSQ}, 0x3b000000, v{vSQ}")
        a.e(f"v_fma_f32 v{vSQ}, -v{vSUM}, v{vSUM}, v{vSQ}\nv_max_f32 v{vSQ}, 0, v{vSQ}")
        a.e(f"v_cvt_pk_bf16_f32 v{vSQ}, v{vSQ}, v{vSQ}\nv_and_b32 v{vSQ}, 0xffff0000, v{vSQ}\nv_add_f32 v{vSQ}, 0x3727c5ac, v{vSQ}")
        a.e(f"v_cvt_pk_bf16_f32 v{vSQ}, v{vSQ}, v{vSQ}\nv_and_b32 v{vSQ}, 0xffff0000, v{vSQ}\nv_sqrt_f32 v{vSQ}, v{vSQ}")
        a.e(f"v_cvt_pk_bf16_f32 v240, -v{vSUM}, v{vSQ}\nv_and_b32 v241, 0xffff0000, v240\nv_rcp_f32 v241, v241")
        a.e(f"v_lshlrev_b32 v236, 4, v236\ns_mov_b32 s{sT[5]}, {WS_STAT}")
        a.e(f"s_waitcnt lgkmcnt(0)\ns_add_u32 s{sTAG}, s{sTAG}, 1\ns_xor_b32 s{sTAG+1}, s{sTAG}, 0x5bd1e995")
        a.e(f"v_mov_b32 v242, s{sTAG}\nv_mov_b32 v243, s{sTAG+1}")
        st = a.take()
        a.ext(main)
        d1 = self.p1_dma(1)
        per = (len(st) + 7) // 8
        for k, grp in enumerate(d1):
            a.ext(grp); a.ext(st[k * per:(k + 1) * per])
        a.e("s_mov_b32 exec_lo, 0x80000000\ns_mov_b32 exec_hi, 0x80000000")
        a.e(f"buffer_store_dwordx4 v[240:243], v236, s[{R_WS}:{R_WS+3}], s{sT[5]} offen sc1", "spub")
        a.e("s_mov_b64 exec, -1")
        self.stamp()
        a.wait_vm("st0")
        a.e("s_barrier")
        a.ext(self.p1_reads(0, 0))
        self.stamp()
        main = a.take()
        P = vPAR
        vDT, vRE, vIM, vA, vBv, t0 = P, P + 1, P + 2, P + 3, P + 4, P + 5
        a.wait_vm("par")
        a.e(f"v_lshlrev_b32 v{vDT}, 16, v{vDT}\nv_lshlrev_b32 v{vRE}, 16, v{vRE}\nv_lshlrev_b32 v{vIM}, 16, v{vIM}")
        a.e(f"v_mul_f32 v{vDT}, 0x3fb8aa3b, v{vDT}\nv_exp_f32 v{vDT}, v{vDT}")
        a.e(f"v_cvt_pk_bf16_f32 v{vDT}, v{vDT}, v{vDT}\nv_and_b32 v{vDT}, 0xffff0000, v{vDT}")
        a.e(f"v_mul_f32 v{vA}, v{vDT}, v{vRE}\nv_mul_f32 v{vBv}, v{vDT}, v{vIM}")
        a.e(f"v_mul_f32 v{vA}, 0x3fb8aa3b, v{vA}\nv_mul_f32 v{vBv}, 0.15915494, v{vBv}")
        self.cpow(vLAM, None, vA, vBv, t0)
        self.cpow(vL16, "0x41800000", vA, vBv, t0)
        a.e(f"s_lshl_b32 s{sT[5]}, s{sW}, 1\nv_add_u32 v{t0+2}, s{sT[5]}, v{vH}\nv_lshlrev_b32 v{t0+3}, 4, v{t0+2}\nv_cvt_f32_u32 v{t0+3}, v{t0+3}")
        self.cpow(vL16S, f"v{t0+3}", vA, vBv, t0)
        for e_, dst in enumerate([vGW0, vGW1]):
            a.e(f"s_sub_i32 s{sT[5]}, s{sC}, {1+e_}\nv_lshlrev_b32 v{t0+3}, 1, v{t0+2}\nv_sub_u32 v{t0+3}, s{sT[5]}, v{t0+3}")
            a.e(f"v_cmp_le_i32 s[{18+2*e_}:{19+2*e_}], 0, v{t0+3}\nv_max_i32 v{t0+3}, 0, v{t0+3}\nv_lshlrev_b32 v{t0+3}, 7, v{t0+3}\nv_cvt_f32_u32 v{t0+3}, v{t0+3}")
            self.cpow(dst, f"v{t0+3}", vA, vBv, t0)
        a.e(f"v_add_f32 v{t0}, -1.0, v{vLAM}\nv_mul_f32 v{t0+1}, v{vRE}, v{vRE}\nv_fma_f32 v{t0+1}, v{vIM}, v{vIM}, v{t0+1}\nv_rcp_f32 v{t0+1}, v{t0+1}")
        a.e(f"v_mul_f32 v{vCO}, v{t0}, v{vRE}\nv_fma_f32 v{vCO}, v{vLAM+1}, v{vIM}, v{vCO}")
        a.e(f"v_mul_f32 v{vCO+1}, v{vLAM+1}, v{vRE}\nv_fma_f32 v{vCO+1}, -v{t0}, v{vIM}, v{vCO+1}")
        a.e(f"v_add_f32 v{t0+1}, v{t0+1}, v{t0+1}\nv_mul_f32 v{vCO}, v{vCO}, v{t0+1}\nv_mul_f32 v{vCO+1}, v{vCO+1}, v{t0+1}")
        a.e(f"v_lshrrev_b32 v{T+13}, 2, v0\nv_and_b32 v{T+13}, 4, v{T+13}\nv_xor_b32 v{T+13}, v0, v{T+13}\nv_and_b32 v{T+13}, 7, v{T+13}\nv_lshlrev_b32 v{T+13}, 4, v{T+13}")
        a.e(f"v_lshl_add_u32 v{T+13}, v{vJ}, 10, v{T+13}\ns_mul_i32 s{sT[5]}, s{sW}, {352*1024}\ns_lshl_b32 s{sT[6]}, s{sNB}, 7\ns_add_u32 s{sT[5]}, s{sT[5]}, s{sT[6]}")
        a.e(f"v_add_u32 v{vW2D[0]}, s{sT[5]}, v{T+13}")
        for i in range(1, 4): a.e(f"v_add_u32 v{vW2D[i]}, {7168*i}, v{vW2D[0]}")
        a.e(f"v_bfe_u32 v{T+13}, v0, 2, 2\nv_lshl_add_u32 v{T+13}, v{vH}, 2, v{T+13}\nv_lshl_add_u32 v{T+13}, v{T+13}, 7, v{T+12}")
        a.e(f"v_lshlrev_b32 v{T+14}, 3, v0\nv_and_b32 v{T+14}, 64, v{T+14}\nv_xor_b32 v{T+13}, v{T+13}, v{T+14}")
        a.e(f"s_lshr_b32 s{sT[6]}, s{sT[8]}, 9\nv_xor_b32 v{T+13}, s{sT[6]}, v{T+13}")
        a.e(f"v_xor_b32 v{T+14}, 64, v{T+13}\nv_add_u32 v{vW2R[0]}, s{sWA}, v{T+13}\nv_add_u32 v{vW2R[1]}, s{sWA}, v{T+14}")
        a.e(f"v_lshrrev_b32 v{T+13}, 3, v{vR}\nv_lshlrev_b32 v{T+13}, 2, v{T+13}\nv_and_or_b32 v{T+13}, v{vR}, 3, v{T+13}\nv_and_b32 v{T+14}, 4, v{vR}\nv_lshl_add_u32 v{T+13}, v{T+14}, 2, v{T+13}")
        a.e(f"s_lshl_b32 s{sT[5]}, s{sT[3]}, 9\ns_add_u32 s{sT[5]}, s{sT[5]}, {WS_STAT}\nv_lshlrev_b32 v15, 2, v{T+13}\nv_lshl_add_u32 v14, v{T+13}, 4, s{sT[5]}")
        self.filler = a.take()
        a.ext(main)

    def mainloop(self):
        a = self.a; o = self.o
        win = {}
        for st in range(-1, 5): win[st] = self.p1_dma(st + 3)
        win[5] = self.wb_issue(0) + self.wb_issue(1)
        sld = Asm(); sld.e(f"buffer_load_dwordx4 v[{vST}:{vST+3}], v14, s[{R_WS}:{R_WS+3}], 0 offen sc1", "stat")
        win[6] = [sld.take()]
        win[6] += self.wb_issue(2) + self.wb_issue(3)
        win[7] = []
        nfill = len(self.filler)
        def share(w, jj):
            g = win[w]; n = len(g)
            cuts = [0, (n + 3) // 4, (n + 3) // 4 + (n + 2) // 4, n - n // 4, n]
            if w == -1: cuts = [0, 0, 3, 6, 9]
            k = (jj + 1) & 3
            return g[cuts[k]:cuts[k + 1]]
        for st in range(8):
            for jj in range(4):
                B = vBUF[jj & 1]; t = f"r{st}_{jj}_"
                fill = []
                last = st == 7 and jj == 3
                if jj == 3 and not last:
                    a.wait_both(f"st{st+1}", "*")
                    a.e("s_barrier")
                    reads = self.p1_reads(st + 1, 0)
                elif jj < 3: reads = self.p1_reads(st, jj + 1)
                else: reads = []
                dm = share(st if jj == 3 else st - 1, jj)
                first = st == 0 and jj == 0
                rd = list(reads); dq = list(dm)
                for m in range(5):
                    a.wait_ds(t + str(m))
                    acc = r(vACC[m], 16); c = "0" if first else acc
                    if m < 2: a.e(f"v_mfma_f32_32x32x16_bf16 {acc}, {r(B,4)}, {r(B+4+4*m,4)}, {c}")
                    else: a.e(f"v_mfma_f32_32x32x16_bf16 {acc}, {r(B+4+4*m,4)}, {r(B,4)}, {c}")
                    nrd = [3, 2, 2, 2, 0][m]
                    a.ext(rd[:nrd]); rd = rd[nrd:]
                    if m in (1, 3, 4) and dq: a.ext(dq.pop(0))
                    nf = [0, 1, 2, 1, 2][m]
                    a.ext(self.filler[:nf]); self.filler = self.filler[nf:]
                    if o["csum"] and m in ([0, 1] if jj == 0 else [1 + jj]):
                        sa = r(vS[m], 4)
                        a.e(f"v_mfma_f32_16x16x32_bf16 {sa}, {r(vSEL,4)}, {r(B+4+4*m,4)}, {'0' if st == 0 else sa}")
                assert not rd and not dq
        assert not self.filler
        self.stamp()

    def finish(self):
        a = self.a; o = self.o
        if o["diag"]:
            a.e("s_waitcnt vmcnt(0) lgkmcnt(0)\ns_memrealtime s[100:101]\ns_waitcnt lgkmcnt(0)")
            a.e(f"v_writelane_b32 v1, s38, 62\nv_writelane_b32 v1, s100, 63")
            a.e(f"s_lshl_b32 s{sT[0]}, s2, 2\ns_add_u32 s{sT[0]}, s{sT[0]}, s{sW}\ns_lshl_b32 s{sT[0]}, s{sT[0]}, 8\ns_add_u32 s{sT[0]}, s{sT[0]}, {WS_DIAG}")
            a.e(f"v_lshlrev_b32 v2, 2, v0\nbuffer_store_dword v1, v2, s[{R_WS}:{R_WS+3}], s{sT[0]} offen")
        a.e("L_end:\ns_endpgm")

    def build(self):
        self.prologue()
        self.mainloop()
        if self.o["stop"] != "main":
            from gen2 import epilogue1, phase2
            epilogue1(self)
            if self.o["stop"] != "p1": phase2(self)
            else:
                for grp in self.side_left: self.a.ext(grp)
        self.finish()
        ins = resolve(self.a.ins)
        ins, added = pad(ins)
        body = render(ins)
        ref = open(f"cdna_kernels/{NAME}.s.ref").read()
        head = "".join(l + "\n" for l in ref.split("\n") if l.startswith(";") and "@launch" not in l)
        txt = head + f"; @launch grid=(256,1,1) block=(256,1,1) lds={LDS_BYTES}\n"
        txt += f'.amdgcn_target "amdgcn-amd-amdhsa--gfx950"\n.text\n.globl {KERN}\n.p2align 8\n.type {KERN},@function\n{KERN}:\n'
        txt += body
        txt += f'''.section .rodata,"a"
.p2align 6
.amdhsa_kernel {KERN}
  .amdhsa_next_free_vgpr 512
  .amdhsa_next_free_sgpr 102
  .amdhsa_accum_offset 256
  .amdhsa_group_segment_fixed_size 0
  .amdhsa_kernarg_size 136
  .amdhsa_user_sgpr_count 2
  .amdhsa_user_sgpr_kernarg_segment_ptr 1
  .amdhsa_system_sgpr_workgroup_id_x 1
.end_amdhsa_kernel
'''
        self.stats = dict(n=len(ins), nops=added)
        return txt

if __name__ == "__main__":
    opts = {}
    out = None
    for x in sys.argv[1:]:
        if "=" in x:
            k, v = x.split("="); opts[k] = int(v) if v.lstrip("-").isdigit() else v
        else: out = x
    g = Gen(**opts)
    t = g.build()
    open(out or f"cdna_kernels/{NAME}.s", "w").write(t)
    print(g.stats)
```

```python
import sys, os
sys.path.insert(0, os.path.dirname(os.path.abspath(__file__)))
from asmlib import *

NAME = "parallel_sum__ssm_conv_s5__dense_activation_squared_relu__prompt"
KERN = NAME + "_kernel"

WS_AGG, WS_FLAG, WS_STAT, WS_DIAG, WS_HID = 0x1000, 0x40000, 0x50000, 0x80000, 0x100000
WS_SIZE = WS_HID + 64 * 150 * 1024
L_WAVE = 24576
L_BS, L_WF, L_MISC = 98304, 122880, 159744
L_S, L_RS = L_MISC, L_MISC + 2560
L_SEG, L_SEG2, L_TR, L_RED = 118784, 120832, 98304, 98304
LDS_BYTES = 163840
S_X, S_LRE, S_LIM, S_BRE, S_BIM, S_CRE, S_CIM, S_LDT = 4, 6, 8, 10, 12, 14, 16, 18
S_D, S_W1, S_B1, S_W2, S_B2, S_OUT, S_DBG, S_WS = 20, 24, 26, 28, 30, 32, 34, 36
R_X, R_BRE, R_BIM, R_W1, R_CRE, R_CIM, R_W2, R_WS, R_OUT = 40, 44, 48, 52, 56, 60, 64, 68, 72
sW, sC, sG, sRB, sNB, sT0 = 76, 77, 78, 79, 80, 81
sWA = 82
sM_B, sM_F = 83, 86
sTAG = 84
sT = [87, 88, 89, 90, 91, 92, 93, 94, 95]
sONE = 96
sHID = 97
sK0, sK1 = 98, 99
vL = 0
vXD, vBD, vFD = [2, 3, 4, 5], 6, [7, 8, 9]
vSUM, vSQ = 10, 11
vW2R = [12, 13]
vACC = [16, 32, 48, 64, 80]
vBUF = [96, 120]
vXR, vBR, vFR = [144, 145, 146, 147], [148, 149, 150, 151], [152, 153, 154, 155]
vS = [200, 204, 208, 212, 216]
vSEL = 156
vB1 = [161, 174, 175]
vLAM, vL16, vL16S, vCO, vGW0, vGW1 = 162, 164, 166, 168, 170, 172
vW2D = [176, 177, 178, 179]
vT = 180
vU, vRSV, vG = 200, 232, 248
vCD, vCR = vBR, vXR
vAUG, vRF = 96, 116
vPAR = 220
vST = 248

def r(n, k=1): return f"v{n}" if k == 1 else f"v[{n}:{n+k-1}]"
def sr(n, k=1): return f"s{n}" if k == 1 else f"s[{n}:{n+k-1}]"
def bfrag(idx): return f"a[{4*idx}:{4*idx+3}]" if idx < 64 else r(96 + 4 * (idx - 64), 4)
def bhalf(idx, u): return f"a[{4*idx+2*u}:{4*idx+2*u+1}]" if idx < 64 else r(96 + 4 * (idx - 64) + 2 * u, 2)

class Gen:
    def __init__(self, **o):
        self.o = dict(diag=0, csum=1, stop=None, e3_at=14, ring=6, codepf=1, map48=1)
        self.o.update(o)
        self.a = Asm()
        self.nstamp = 0
    def stamp(self):
        if not self.o["diag"]: return
        a = self.a
        a.e("s_waitcnt lgkmcnt(0)")
        a.e("s_memtime s[100:101]")
        a.e("s_waitcnt lgkmcnt(0)")
        a.e(f"v_writelane_b32 v1, s100, {self.nstamp}")
        self.nstamp += 1
    def srd(self, R, P, nbytes):
        a = self.a
        a.e(f"s_mov_b32 s{R}, s{P}\ns_mov_b32 s{R+1}, s{P+1}\ns_mov_b32 s{R+2}, {nbytes}\ns_mov_b32 s{R+3}, 0x20000")

    def p1_dma(self, st):
        slot = st % 3; tag = f"st{st}"; g = []
        b = Asm()
        for i in range(4):
            if i == 0:
                b.e(f"s_add_u32 m0, s{sWA}, {slot*4096}")
                b.e(f"s_movk_i32 s{sK0}, {st*128}")
            b.e(f"buffer_load_dwordx4 v{vXD[i]}, s[{R_X}:{R_X+3}], s{sK0} offen offset:{1024*i} lds", tag)
            g.append(b.take())
        b.e(f"s_add_u32 m0, s{sM_B}, {slot*8192}\ns_mov_b32 s{sK1}, {st*176128}")
        b.e(f"buffer_load_dwordx4 v{vBD}, s[{R_BRE}:{R_BRE+3}], s{sK0} offen lds", tag); g.append(b.take())
        b.e(f"s_add_u32 m0, s{sM_B}, {slot*8192+4096}\ns_nop 0")
        b.e(f"buffer_load_dwordx4 v{vBD}, s[{R_BIM}:{R_BIM+3}], s{sK0} offen lds", tag); g.append(b.take())
        for i in range(3):
            if i == 0: b.e(f"s_add_u32 m0, s{sM_F}, {slot*12288}\ns_nop 0")
            b.e(f"buffer_load_dwordx4 v{vFD[i]}, s[{R_W1}:{R_W1+3}], s{sK1} offen offset:{1024*i} lds", tag)
            g.append(b.take())
        return g
    def p1_reads(self, st, jj):
        slot = st % 3; B = vBUF[jj & 1]; b = Asm(); t = f"r{st}_{jj}_"
        b.e(f"ds_read_b128 {r(B,4)}, v{vXR[jj]} offset:{slot*4096}", t + "0")
        b.e(f"ds_read_b128 {r(B+4,4)}, v{vBR[jj]} offset:{slot*8192}", t + "0")
        b.e(f"ds_read_b128 {r(B+8,4)}, v{vBR[jj]} offset:{slot*8192+4096}", t + "1")
        for j in range(3):
            for u in range(2):
                b.e(f"ds_read_b64_tr_b16 {r(B+12+4*j+2*u,2)}, v{vFR[jj]} offset:{slot*12288+768*u+64*j}", t + str(2 + j))
        return b.take()

    RING = [3, 4, 5, 2, 0, 1]
    def unit_desc(self, k):
        if k < 11: return ("f", k)
        k -= 11
        return ("c", k >> 2, (k >> 1) & 1, k & 1)
    def wb_issue(self, k):
        d = self.unit_desc(k); slot = self.RING[k % 6]; g = []; b = Asm(); tag = f"u{k}"
        if k >= 6: b.wait_ds(f"ur{k-6}")
        b.e(f"s_add_u32 m0, s{sWA}, {slot*4096}")
        if d[0] == "f":
            b.e(f"s_mov_b32 s{sK0}, {d[1]*32768}")
            for i in range(4):
                b.e(f"buffer_load_dwordx4 v{vW2D[i]}, s[{R_W2}:{R_W2+3}], s{sK0} offen offset:{1024*i} lds", tag); g.append(b.take())
        else:
            _, cb, mat, n = d
            b.e(f"s_xor_b32 s{sK0}, s{sT[8]}, {n*32768+cb*128}")
            R = R_CIM if mat else R_CRE
            for i in range(4):
                b.e(f"buffer_load_dwordx4 v{vCD[i]}, s[{R}:{R+3}], s{sK0} offen offset:{1024*i} lds", tag); g.append(b.take())
        return g
    def wb_drain(self, k):
        d = self.unit_desc(k); slot = self.RING[k % 6]; b = Asm(); tag = f"ur{k}"
        b.wait_vm(f"u{k}")
        if d[0] == "f":
            for s1 in range(2):
                for n in range(2):
                    for u in range(2):
                        b.e(f"ds_read_b64_tr_b16 {bhalf(2*(2*d[1]+s1)+n, u)}, v{vW2R[n]} offset:{slot*4096+(16*s1+8*u)*128}", tag)
        else:
            _, cb, mat, n = d
            for s in range(4):
                ks = 4 * (2 * cb + (s >> 1)) + 2 * mat + (s & 1)
                b.e(f"ds_read_b128 {bfrag(44+2*ks+n)}, v{vCR[s]} offset:{slot*4096}", tag)
        return b.take()

    def cpow(self, dst, vn, a_, b_, t):
        a = self.a
        if vn is None:
            a.e(f"v_exp_f32 v{t}, v{a_}\nv_fract_f32 v{t+1}, v{b_}")
        else:
            a.e(f"v_mul_f32 v{t}, {vn}, v{a_}\nv_mul_f32 v{t+1}, {vn}, v{b_}\nv_exp_f32 v{t}, v{t}\nv_fract_f32 v{t+1}, v{t+1}")
        a.e(f"v_cos_f32 v{dst}, v{t+1}\nv_sin_f32 v{dst+1}, v{t+1}")
        a.e(f"v_mul_f32 v{dst}, v{dst}, v{t}\nv_mul_f32 v{dst+1}, v{dst+1}, v{t}")

    def prologue(self):
        a = self.a; o = self.o; T = vT
        a.e("s_cmp_ge_u32 s2, 256\ns_cbranch_scc1 L_end")
        for R, off in [(R_X, 0), (R_WS, 128), (R_BRE, 24), (R_BIM, 32), (R_W1, 80)]:
            a.e(f"s_load_dwordx2 s[{R}:{R+1}], s[0:1], {off}")
        a.e("s_load_dwordx4 s[4:7], s[0:1], 8")
        a.e("s_load_dwordx4 s[8:11], s[0:1], 56")
        a.e("s_load_dwordx2 s[12:13], s[0:1], 88")
        a.e("s_load_dwordx2 s[14:15], s[0:1], 104")
        for R, off in [(R_CRE, 40), (R_CIM, 48), (R_W2, 96), (R_OUT, 112)]:
            a.e(f"s_load_dwordx2 s[{R}:{R+1}], s[0:1], {off}")
        if o["diag"] or o.get("spinto"): a.e("s_memrealtime s[38:39]\ns_memtime s[100:101]\nv_mov_b32 v1, 0")
        a.e(f"v_lshrrev_b32 v{T}, 6, v0\nv_and_b32 v0, 63, v0")
        a.e(f"s_and_b32 s{sT[0]}, s2, 7\ns_lshr_b32 s{sT[1]}, s2, 3")
        a.e(f"v_readfirstlane_b32 s{sW}, v{T}")
        if o["codepf"]:
            a.e("s_getpc_b64 s[16:17]")
            a.e("L_pc:")
            a.e(f"s_lshl_b32 s{sT[2]}, s{sT[1]}, 10\nv_lshlrev_b32 v{T+1}, 4, v0\nv_add_u32 v{T+1}, s{sT[2]}, v{T+1}")
            a.e(f"v_min_u32 v{T+1}, L_end-L_pc-16, v{T+1}")
            a.e(f"global_load_dwordx4 v[{vG+4}:{vG+7}], v{T+1}, s[16:17]", "pf")
        if o["map48"]:
            a.e(f"s_lshr_b32 s{sC}, s{sT[0]}, 1\ns_lshl_b32 s{sC}, s{sC}, 2\ns_lshr_b32 s{sT[2]}, s{sT[1]}, 3\ns_add_u32 s{sC}, s{sC}, s{sT[2]}")
            a.e(f"s_and_b32 s{sG}, s{sT[0]}, 1\ns_lshl_b32 s{sG}, s{sG}, 3\ns_and_b32 s{sNB}, s{sT[1]}, 7\ns_add_u32 s{sG}, s{sG}, s{sNB}")
        else:
            a.e(f"s_lshr_b32 s{sT[2]}, s{sT[1]}, 4\ns_lshl_b32 s{sC}, s{sT[0]}, 1\ns_add_u32 s{sC}, s{sC}, s{sT[2]}\ns_and_b32 s{sG}, s{sT[1]}, 15")
            a.e(f"s_and_b32 s{sNB}, s{sT[1]}, 7\ns_lshr_b32 s{sT[2]}, s{sT[1]}, 3")
        a.e(f"s_lshl_b32 s{sRB}, s{sT[0]}, 2\ns_add_u32 s{sRB}, s{sRB}, s{sT[2]}")
        a.e(f"s_mul_i32 s{sT0}, s{sG}, 3\ns_min_u32 s{sT0}, s{sT0}, 40")
        a.e(f"s_mul_i32 s{sWA}, s{sW}, {L_WAVE}")
        a.e(f"s_lshl_b32 s{sM_B}, s{sW}, 10\ns_add_u32 s{sM_B}, s{sM_B}, {L_BS}")
        a.e(f"s_mul_i32 s{sM_F}, s{sW}, 3072\ns_add_u32 s{sM_F}, s{sM_F}, {L_WF}")
        for R, nb in [(R_X, 2048 * 1024), (R_BRE, 512 * 1024), (R_BIM, 512 * 1024), (R_W1, 512 * 2752), (R_WS, WS_SIZE),
                      (R_CRE, 512 * 1024), (R_CIM, 512 * 1024), (R_W2, 1376 * 1024), (R_OUT, 2048 * 2048)]:
            a.e(f"s_mov_b32 s{R+2}, {nb}\ns_mov_b32 s{R+3}, 0x20000")
        vJ, vCX, vH, vR = 232, 233, 160, 235
        a.e(f"v_lshrrev_b32 v{vJ}, 3, v0\nv_lshrrev_b32 v{T+2}, 4, v0\nv_xor_b32 v{vCX}, v0, v{T+2}\nv_and_b32 v{vCX}, 7, v{vCX}\nv_lshlrev_b32 v{vCX}, 4, v{vCX}")
        a.e(f"v_lshrrev_b32 v{vH}, 5, v0\nv_and_b32 v{vR}, 31, v0")
        a.e(f"s_lshl_b32 s{sT[5]}, s{sC}, 4\ns_add_u32 s{sT[5]}, s{sT[5]}, s{sG}\ns_lshl_b32 s{sT[5]}, s{sT[5]}, 2\ns_add_u32 s{sT[5]}, s{sT[5]}, s{sW}\ns_lshl_b32 s{sT[5]}, s{sT[5]}, 1")
        a.e(f"v_add_u32 v236, s{sT[5]}, v{vH}\nv_lshlrev_b32 v237, 10, v236\nv_lshl_add_u32 v237, v{vR}, 4, v237")
        a.e(f"s_lshl_b32 s{sT[3]}, s{sC}, 2\ns_add_u32 s{sT[3]}, s{sT[3]}, s{sW}")
        a.e(f"s_lshl_b32 s{sT[4]}, s{sT[3]}, 15")
        a.e(f"v_lshlrev_b32 v{T+2}, 4, v{vH}\nv_and_or_b32 v{T+2}, v{vJ}, 3, v{T+2}")
        a.e(f"v_lshl_add_u32 v{T+2}, v{T+2}, 10, v{vCX}\nv_add_u32 v{vXD[0]}, s{sT[4]}, v{T+2}")
        a.e(f"v_xor_b32 v{vXD[1]}, 64, v{vXD[0]}\nv_add_u32 v{vXD[2]}, {2*3072}, v{vXD[0]}\nv_add_u32 v{vXD[3]}, {3*3072}, v{vXD[1]}\nv_add_u32 v{vXD[1]}, 3072, v{vXD[1]}")
        a.e(f"s_lshl_b32 s{sT[5]}, s{sG}, 2\ns_add_u32 s{sT[5]}, s{sT[5]}, s{sW}\ns_lshl_b32 s{sT[5]}, s{sT[5]}, 13")
        a.e(f"s_and_b32 s{sT[6]}, s{sW}, 1\ns_lshl_b32 s{sT[8]}, s{sT[6]}, 15\ns_lshl_b32 s{sT[6]}, s{sT[6]}, 6")
        a.e(f"v_xor_b32 v{T+2}, s{sT[6]}, v{vCX}\nv_lshl_add_u32 v{T+2}, v{vJ}, 10, v{T+2}\nv_add_u32 v{vBD}, s{sT[5]}, v{T+2}")
        a.e(f"s_mul_i32 s{sT[5]}, s{sW}, 192\ns_lshl_b32 s{sT[7]}, s{sT0}, 6\ns_mov_b32 s{sK0}, 43691\ns_movk_i32 s{sK1}, 2752")
        assert all((q * 43691) >> 19 == q // 12 for q in range(768))
        for ii in range(3):
            a.e(f"v_add_u32 v{T+2}, s{sT[5]}, v0")
            if ii: a.e(f"v_add_u32 v{T+2}, {64*ii}, v{T+2}")
            a.e(f"v_mul_u32_u24 v{T+3}, s{sK0}, v{T+2}\nv_lshrrev_b32 v{T+3}, 19, v{T+3}")
            a.e(f"v_mul_u32_u24 v{T+4}, 12, v{T+3}\nv_sub_u32 v{T+4}, v{T+2}, v{T+4}\nv_lshlrev_b32 v{T+4}, 4, v{T+4}")
            a.e(f"v_mad_u32_u24 v{T+4}, v{T+3}, s{sK1}, v{T+4}\nv_add_u32 v{vFD[ii]}, s{sT[7]}, v{T+4}")
            if ii: a.e(f"v_subrev_u32 v{vFD[ii]}, {1024*ii}, v{vFD[ii]}")
        a.e(f"s_lshl_b32 s{sT[5]}, s{sG}, 6\nv_lshl_add_u32 v238, v{vR}, 1, s{sT[5]}\nv_lshl_add_u32 v239, v{vR}, 1, s{sT[7]}")
        a.e(f"s_mov_b32 s{sONE}, 0x3f803f80\nv_mov_b32 v{vSUM}, 0\nv_mov_b32 v{vSQ}, 0")
        a.e("s_waitcnt lgkmcnt(0)")
        if o["diag"]:
            a.e("v_writelane_b32 v1, s100, 0"); self.nstamp = 1; self.stamp()
        a.e(f"s_load_dword s{sTAG}, s[{R_WS}:{R_WS+1}], 0")
        a.e(f"buffer_load_dwordx4 v[240:243], v237, s[{R_X}:{R_X+3}], 0 offen", "srow")
        a.e(f"buffer_load_dwordx4 v[244:247], v237, s[{R_X}:{R_X+3}], 0 offen offset:512", "srow")
        main = a.take()
        vQ = T + 3
        a.e(f"v_bfe_u32 v{vQ}, v0, 1, 3\nv_xor_b32 v{vQ}, v{vQ}, v{vH}")
        a.e(f"v_lshlrev_b32 v{T+4}, 7, v{vR}")
        a.e(f"v_bfe_u32 v{T+11}, v0, 2, 2\nv_lshl_add_u32 v{T+11}, v{vH}, 3, v{T+11}\nv_mul_u32_u24 v{T+11}, 192, v{T+11}")
        a.e(f"v_bfe_u32 v{T+12}, v0, 4, 1\nv_lshlrev_b32 v{T+12}, 5, v{T+12}\nv_and_b32 v{T+13}, 3, v0\nv_lshl_add_u32 v{T+12}, v{T+13}, 3, v{T+12}")
        a.e(f"v_add_u32 v{T+11}, v{T+11}, v{T+12}")
        for jj in range(4):
            a.e(f"s_add_u32 s{sT[5]}, s{sW}, {jj}\ns_and_b32 s{sT[5]}, s{sT[5]}, 3\ns_lshl_b32 s{sT[6]}, s{sT[5]}, 1\ns_mul_i32 s{sT[5]}, s{sT[5]}, 3072\ns_add_u32 s{sT[5]}, s{sT[5]}, {L_WF}")
            a.e(f"v_xor_b32 v{T+13}, s{sT[6]}, v{vQ}\nv_lshl_add_u32 v{T+13}, v{T+13}, 4, v{T+4}")
            a.e(f"v_add_u32 v{vXR[jj]}, s{sWA}, v{T+13}\nv_add_u32 v{vBR[jj]}, {L_BS}, v{T+13}\nv_add_u32 v{vFR[jj]}, s{sT[5]}, v{T+11}")
        a.e(f"v_lshrrev_b32 v{T+13}, 2, v0\nv_xor_b32 v{T+13}, v{T+13}, v0\nv_and_b32 v{T+13}, 4, v{T+13}\nv_cmp_eq_u32 vcc, 0, v{T+13}\nv_mov_b32 v{T+14}, s{sONE}")
        a.e(f"s_mul_i32 s{sHID}, s{sT[3]}, {150*1024}\ns_add_u32 s{sHID}, s{sHID}, {WS_HID}")
        a.e(f"v_cndmask_b32 v{vSEL}, 0, v{T+14}, vcc\nv_mov_b32 v{vSEL+1}, v{vSEL}\nv_mov_b32 v{vSEL+2}, v{vSEL}\nv_mov_b32 v{vSEL+3}, v{vSEL}")
        setup = a.take()
        d0 = self.p1_dma(0)
        a.ext(main)
        per = (len(setup) + 8) // 9
        for k, grp in enumerate(d0):
            a.ext(grp); a.ext(setup[k * per:(k + 1) * per])
        a.e(f"global_load_ushort v{vPAR}, v238, s[8:9]", "par")
        a.e(f"global_load_ushort v{vPAR+1}, v238, s[4:5]", "par")
        a.e(f"global_load_ushort v{vPAR+2}, v238, s[6:7]", "par")
        for j in range(3): a.e(f"global_load_ushort v{vB1[j]}, v239, s[12:13] offset:{64*j}", "b1")
        main = a.take()
        a.wait_vm("srow")
        for k in range(8): a.e(f"v_dot2c_f32_bf16 v{vSUM}, s{sONE}, v{240+k}\nv_dot2c_f32_bf16 v{vSQ}, v{240+k}, v{240+k}")
        for sh in ("row_shr:1", "row_shr:2", "row_shr:4", "row_shr:8"):
            for x in (vSUM, vSQ): a.e(f"v_add_f32_dpp v{x}, v{x}, v{x} {sh} row_mask:0xf bank_mask:0xf bound_ctrl:0")
        for x in (vSUM, vSQ): a.e(f"v_add_f32_dpp v{x}, v{x}, v{x} row_bcast:15 row_mask:0xa bank_mask:0xf")
        a.e(f"v_mul_f32 v{vSUM}, 0x3b000000, v{vSUM}\nv_mul_f32 v{vSQ}, 0x3b000000, v{vSQ}")
        a.e(f"v_fma_f32 v{vSQ}, -v{vSUM}, v{vSUM}, v{vSQ}\nv_max_f32 v{vSQ}, 0, v{vSQ}")
        a.e(f"v_cvt_pk_bf16_f32 v{vSQ}, v{vSQ}, v{vSQ}\nv_and_b32 v{vSQ}, 0xffff0000, v{vSQ}\nv_add_f32 v{vSQ}, 0x3727c5ac, v{vSQ}")
        a.e(f"v_cvt_pk_bf16_f32 v{vSQ}, v{vSQ}, v{vSQ}\nv_and_b32 v{vSQ}, 0xffff0000, v{vSQ}\nv_sqrt_f32 v{vSQ}, v{vSQ}")
        a.e(f"v_cvt_pk_bf16_f32 v240, -v{vSUM}, v{vSQ}\nv_and_b32 v241, 0xffff0000, v240\nv_rcp_f32 v241, v241")
        a.e(f"v_lshlrev_b32 v236, 4, v236\ns_mov_b32 s{sT[5]}, {WS_STAT}")
        a.e(f"s_waitcnt lgkmcnt(0)\ns_add_u32 s{sTAG}, s{sTAG}, 1\ns_xor_b32 s{sTAG+1}, s{sTAG}, 0x5bd1e995")
        a.e(f"v_mov_b32 v242, s{sTAG}\nv_mov_b32 v243, s{sTAG+1}")
        st = a.take()
        a.ext(main)
        d1 = self.p1_dma(1)
        per = (len(st) + 7) // 8
        for k, grp in enumerate(d1):
            a.ext(grp); a.ext(st[k * per:(k + 1) * per])
        a.e("s_mov_b32 exec_lo, 0x80000000\ns_mov_b32 exec_hi, 0x80000000")
        a.e(f"buffer_store_dwordx4 v[240:243], v236, s[{R_WS}:{R_WS+3}], s{sT[5]} offen sc1", "spub")
        a.e("s_mov_b64 exec, -1")
        self.stamp()
        a.wait_vm("st0")
        a.e("s_barrier")
        a.ext(self.p1_reads(0, 0))
        self.stamp()
        main = a.take()
        P = vPAR
        vDT, vRE, vIM, vA, vBv, t0 = P, P + 1, P + 2, P + 3, P + 4, P + 5
        a.wait_vm("par")
        a.e(f"v_lshlrev_b32 v{vDT}, 16, v{vDT}\nv_lshlrev_b32 v{vRE}, 16, v{vRE}\nv_lshlrev_b32 v{vIM}, 16, v{vIM}")
        a.e(f"v_mul_f32 v{vDT}, 0x3fb8aa3b, v{vDT}\nv_exp_f32 v{vDT}, v{vDT}")
        a.e(f"v_cvt_pk_bf16_f32 v{vDT}, v{vDT}, v{vDT}\nv_and_b32 v{vDT}, 0xffff0000, v{vDT}")
        a.e(f"v_mul_f32 v{vA}, v{vDT}, v{vRE}\nv_mul_f32 v{vBv}, v{vDT}, v{vIM}")
        a.e(f"v_mul_f32 v{vA}, 0x3fb8aa3b, v{vA}\nv_mul_f32 v{vBv}, 0.15915494, v{vBv}")
        self.cpow(vLAM, None, vA, vBv, t0)
        self.cpow(vL16, "0x41800000", vA, vBv, t0)
        a.e(f"s_lshl_b32 s{sT[5]}, s{sW}, 1\nv_add_u32 v{t0+2}, s{sT[5]}, v{vH}\nv_lshlrev_b32 v{t0+3}, 4, v{t0+2}\nv_cvt_f32_u32 v{t0+3}, v{t0+3}")
        self.cpow(vL16S, f"v{t0+3}", vA, vBv, t0)
        for e_, dst in enumerate([vGW0, vGW1]):
            a.e(f"s_sub_i32 s{sT[5]}, s{sC}, {1+e_}\nv_lshlrev_b32 v{t0+3}, 1, v{t0+2}\nv_sub_u32 v{t0+3}, s{sT[5]}, v{t0+3}")
            a.e(f"v_cmp_le_i32 s[{18+2*e_}:{19+2*e_}], 0, v{t0+3}\nv_max_i32 v{t0+3}, 0, v{t0+3}\nv_lshlrev_b32 v{t0+3}, 7, v{t0+3}\nv_cvt_f32_u32 v{t0+3}, v{t0+3}")
            self.cpow(dst, f"v{t0+3}", vA, vBv, t0)
        a.e(f"v_add_f32 v{t0}, -1.0, v{vLAM}\nv_mul_f32 v{t0+1}, v{vRE}, v{vRE}\nv_fma_f32 v{t0+1}, v{vIM}, v{vIM}, v{t0+1}\nv_rcp_f32 v{t0+1}, v{t0+1}")
        a.e(f"v_mul_f32 v{vCO}, v{t0}, v{vRE}\nv_fma_f32 v{vCO}, v{vLAM+1}, v{vIM}, v{vCO}")
        a.e(f"v_mul_f32 v{vCO+1}, v{vLAM+1}, v{vRE}\nv_fma_f32 v{vCO+1}, -v{t0}, v{vIM}, v{vCO+1}")
        a.e(f"v_add_f32 v{t0+1}, v{t0+1}, v{t0+1}\nv_mul_f32 v{vCO}, v{vCO}, v{t0+1}\nv_mul_f32 v{vCO+1}, v{vCO+1}, v{t0+1}")
        a.e(f"v_lshrrev_b32 v{T+13}, 2, v0\nv_and_b32 v{T+13}, 4, v{T+13}\nv_xor_b32 v{T+13}, v0, v{T+13}\nv_and_b32 v{T+13}, 7, v{T+13}\nv_lshlrev_b32 v{T+13}, 4, v{T+13}")
        a.e(f"v_lshl_add_u32 v{T+13}, v{vJ}, 10, v{T+13}\ns_mul_i32 s{sT[5]}, s{sW}, {352*1024}\ns_lshl_b32 s{sT[6]}, s{sNB}, 7\ns_add_u32 s{sT[5]}, s{sT[5]}, s{sT[6]}")
        a.e(f"v_add_u32 v{vW2D[0]}, s{sT[5]}, v{T+13}")
        for i in range(1, 4): a.e(f"v_add_u32 v{vW2D[i]}, {7168*i}, v{vW2D[0]}")
        a.e(f"v_bfe_u32 v{T+13}, v0, 2, 2\nv_lshl_add_u32 v{T+13}, v{vH}, 2, v{T+13}\nv_lshl_add_u32 v{T+13}, v{T+13}, 7, v{T+12}")
        a.e(f"v_lshlrev_b32 v{T+14}, 3, v0\nv_and_b32 v{T+14}, 64, v{T+14}\nv_xor_b32 v{T+13}, v{T+13}, v{T+14}")
        a.e(f"s_lshr_b32 s{sT[6]}, s{sT[8]}, 9\nv_xor_b32 v{T+13}, s{sT[6]}, v{T+13}")
        a.e(f"v_xor_b32 v{T+14}, 64, v{T+13}\nv_add_u32 v{vW2R[0]}, s{sWA}, v{T+13}\nv_add_u32 v{vW2R[1]}, s{sWA}, v{T+14}")
        a.e(f"v_lshrrev_b32 v{T+13}, 3, v{vR}\nv_lshlrev_b32 v{T+13}, 2, v{T+13}\nv_and_or_b32 v{T+13}, v{vR}, 3, v{T+13}\nv_and_b32 v{T+14}, 4, v{vR}\nv_lshl_add_u32 v{T+13}, v{T+14}, 2, v{T+13}")
        a.e(f"s_lshl_b32 s{sT[5]}, s{sT[3]}, 9\ns_add_u32 s{sT[5]}, s{sT[5]}, {WS_STAT}\nv_lshlrev_b32 v15, 2, v{T+13}\nv_lshl_add_u32 v14, v{T+13}, 4, s{sT[5]}")
        self.filler = a.take()
        a.ext(main)

    def mainloop(self):
        a = self.a; o = self.o
        win = {}
        for st in range(-1, 5): win[st] = self.p1_dma(st + 3)
        win[5] = self.wb_issue(0) + self.wb_issue(1)
        sld = Asm(); sld.e(f"buffer_load_dwordx4 v[{vST}:{vST+3}], v14, s[{R_WS}:{R_WS+3}], 0 offen sc1", "stat")
        win[6] = [sld.take()]
        win[6] += self.wb_issue(2) + self.wb_issue(3)
        win[7] = []
        nfill = len(self.filler)
        def share(w, jj):
            g = win[w]; n = len(g)
            cuts = [0, (n + 3) // 4, (n + 3) // 4 + (n + 2) // 4, n - n // 4, n]
            if w == -1: cuts = [0, 0, 3, 6, 9]
            k = (jj + 1) & 3
            return g[cuts[k]:cuts[k + 1]]
        for st in range(8):
            for jj in range(4):
                B = vBUF[jj & 1]; t = f"r{st}_{jj}_"
                fill = []
                last = st == 7 and jj == 3
                if jj == 3 and not last:
                    a.wait_both(f"st{st+1}", "*")
                    a.e("s_barrier")
                    reads = self.p1_reads(st + 1, 0)
                elif jj < 3: reads = self.p1_reads(st, jj + 1)
                else: reads = []
                dm = share(st if jj == 3 else st - 1, jj)
                first = st == 0 and jj == 0
                rd = list(reads); dq = list(dm)
                for m in range(5):
                    a.wait_ds(t + str(m))
                    acc = r(vACC[m], 16); c = "0" if first else acc
                    if m < 2: a.e(f"v_mfma_f32_32x32x16_bf16 {acc}, {r(B,4)}, {r(B+4+4*m,4)}, {c}")
                    else: a.e(f"v_mfma_f32_32x32x16_bf16 {acc}, {r(B+4+4*m,4)}, {r(B,4)}, {c}")
                    nrd = [3, 2, 2, 2, 0][m]
                    a.ext(rd[:nrd]); rd = rd[nrd:]
                    if m in (1, 3, 4) and dq: a.ext(dq.pop(0))
                    nf = [0, 1, 2, 1, 2][m]
                    a.ext(self.filler[:nf]); self.filler = self.filler[nf:]
                    if o["csum"] and m in ([0, 1] if jj == 0 else [1 + jj]):
                        sa = r(vS[m], 4)
                        a.e(f"v_mfma_f32_16x16x32_bf16 {sa}, {r(vSEL,4)}, {r(B+4+4*m,4)}, {'0' if st == 0 else sa}")
                assert not rd and not dq
        assert not self.filler
        self.stamp()

    def finish(self):
        a = self.a; o = self.o
        if o["diag"]:
            a.e("s_waitcnt vmcnt(0) lgkmcnt(0)\ns_memrealtime s[100:101]\ns_waitcnt lgkmcnt(0)")
            a.e(f"v_writelane_b32 v1, s38, 62\nv_writelane_b32 v1, s100, 63")
            a.e(f"s_lshl_b32 s{sT[0]}, s2, 2\ns_add_u32 s{sT[0]}, s{sT[0]}, s{sW}\ns_lshl_b32 s{sT[0]}, s{sT[0]}, 8\ns_add_u32 s{sT[0]}, s{sT[0]}, {WS_DIAG}")
            a.e(f"v_lshlrev_b32 v2, 2, v0\nbuffer_store_dword v1, v2, s[{R_WS}:{R_WS+3}], s{sT[0]} offen")
        if o.get("spinto"):
            a.e(f"s_waitcnt vmcnt(0) lgkmcnt(0)\nL_sp:\ns_memrealtime s[100:101]\ns_waitcnt lgkmcnt(0)\ns_sub_u32 s100, s100, s38\ns_cmp_lt_u32 s100, {o['spinto']}\ns_cbranch_scc1 L_sp")
        a.e("L_end:\ns_endpgm")

    def build(self):
        self.prologue()
        self.mainloop()
        if self.o["stop"] != "main":
            from gen2 import epilogue1, phase2
            epilogue1(self)
            if self.o["stop"] != "p1": phase2(self)
            else:
                for grp in self.side_left: self.a.ext(grp)
        self.finish()
        ins = resolve(self.a.ins)
        ins, added = pad(ins)
        body = render(ins)
        ref = open(f"cdna_kernels/{NAME}.s.ref").read()
        head = "".join(l + "\n" for l in ref.split("\n") if l.startswith(";") and "@launch" not in l)
        lst = self.o.get("list")
        extra_code = extra_kd = ""
        if not lst: txt = head + f"; @launch grid=(256,1,1) block=(256,1,1) lds={LDS_BYTES}\n"
        else:
            main = f"; @launch kernel={KERN} grid=(256,1,1) block=(256,1,1) lds={LDS_BYTES}\n"
            pre = "; @launch kernel=pre_kernel grid=(256,1,1) block=(256,1,1) lds=0\n"
            txt = head + (main + main if lst == "twice" else pre + main)
            if lst != "twice":
                extra_code = ".globl pre_kernel\n.p2align 8\n.type pre_kernel,@function\npre_kernel:\n"
                if lst == "touch":
                    extra_code += "s_cmp_ge_u32 s2, 256\ns_cbranch_scc1 L_pend\n"
                    bufs = [(0, 2048*1024), (24, 512*1024), (32, 512*1024), (40, 512*1024), (48, 512*1024), (80, 512*2752), (96, 1376*1024)]
                    for i, (off, nb) in enumerate(bufs):
                        extra_code += f"s_load_dwordx2 s[{8+4*i}:{9+4*i}], s[0:1], {off}\ns_mov_b32 s{10+4*i}, {nb}\ns_mov_b32 s{11+4*i}, 0x20000\n"
                    extra_code += "s_lshl_b32 s3, s2, 13\nv_lshlrev_b32 v0, 4, v0\nv_add_u32 v0, s3, v0\ns_waitcnt lgkmcnt(0)\n"
                    for i, (off, nb) in enumerate(bufs):
                        extra_code += f"buffer_load_dwordx4 v[4:7], v0, s[{8+4*i}:{11+4*i}], 0 offen\nv_add_u32 v1, 4096, v0\nbuffer_load_dwordx4 v[8:11], v1, s[{8+4*i}:{11+4*i}], 0 offen\n"
                    extra_code += "s_waitcnt vmcnt(0)\nL_pend:\n"
                extra_code += "s_endpgm\n"
                extra_kd = """.p2align 6
.amdhsa_kernel pre_kernel
  .amdhsa_next_free_vgpr 32
  .amdhsa_next_free_sgpr 64
  .amdhsa_accum_offset 32
  .amdhsa_group_segment_fixed_size 0
  .amdhsa_kernarg_size 136
  .amdhsa_user_sgpr_count 2
  .amdhsa_user_sgpr_kernarg_segment_ptr 1
  .amdhsa_system_sgpr_workgroup_id_x 1
.end_amdhsa_kernel
"""
        txt += f'.amdgcn_target "amdgcn-amd-amdhsa--gfx950"\n.text\n.globl {KERN}\n.p2align 8\n.type {KERN},@function\n{KERN}:\n'
        txt += body + extra_code
        txt += f'''.section .rodata,"a"
.p2align 6
.amdhsa_kernel {KERN}
  .amdhsa_next_free_vgpr 512
  .amdhsa_next_free_sgpr 102
  .amdhsa_accum_offset 256
  .amdhsa_group_segment_fixed_size 0
  .amdhsa_kernarg_size 136
  .amdhsa_user_sgpr_count 2
  .amdhsa_user_sgpr_kernarg_segment_ptr 1
  .amdhsa_system_sgpr_workgroup_id_x 1
.end_amdhsa_kernel
'''
        txt += extra_kd
        self.stats = dict(n=len(ins), nops=added)
        return txt

if __name__ == "__main__":
    opts = {}
    out = None
    for x in sys.argv[1:]:
        if "=" in x:
            k, v = x.split("="); opts[k] = int(v) if v.lstrip("-").isdigit() else v
        else: out = x
    g = Gen(**opts)
    t = g.build()
    open(out or f"cdna_kernels/{NAME}.s", "w").write(t)
    print(g.stats)
```
